```python
import torch

def _softmax(x, axis=-1):
    return torch.softmax(x, dim=axis)
def _gelu(x):
    return torch.nn.functional.gelu(x, approximate="tanh")
def _silu(x):
    return torch.nn.functional.silu(x)
def _sigmoid(x):
    return torch.sigmoid(x)
def _layernorm(x, axis=-1, eps=1e-5):
    m = x.mean(dim=axis, keepdim=True)
    v = x.var(dim=axis, keepdim=True, unbiased=False)
    return (x - m) / torch.sqrt(v + eps)
def _scatter_add(tgt, idx, src, axis=0):
    return tgt.clone().index_add_(axis, idx, src)
def _segment_sum(src, seg, n):
    out = torch.zeros((n,) + src.shape[1:], dtype=src.dtype)
    return out.index_add_(0, seg, src)
def _pad(x, pw):
    flat = tuple(v for pair in reversed(pw) for v in pair)
    return torch.nn.functional.pad(x, flat)

kernel_name = 'recurrent_scan__gqa_block_cached__mixer_channel_mlp__decode'

def setup_inputs():

    _w = (lambda a: (lambda t: t.to(torch.bfloat16) if t.is_floating_point() else t)(torch.as_tensor(a)))
    def _A_setup():
        B, Sq, D = 4, 1, 512
        Hq, Hkv, Sk, Dh = 32, 8, 16384, 128
        assert Hq % Hkv == 0, (Hq, Hkv)
        return {
            "x": _w((lambda *s: torch.randn(*s, dtype=torch.bfloat16) * 0.1)(B, Sq, D)),
            "k_cache": _w((lambda *s: torch.randn(*s, dtype=torch.bfloat16) * 0.8)(B, Hkv, Sk, Dh)),
            "v_cache": _w((lambda *s: torch.randn(*s, dtype=torch.bfloat16) * 3.2)(B, Hkv, Sk, Dh)),
            "wq": _w((lambda *s: torch.randn(*s, dtype=torch.bfloat16) * 0.8)(D, Hq * Dh) * (D ** -0.5)),
            "wo": _w((lambda *s: torch.randn(*s, dtype=torch.bfloat16) * 3.2)(Hq * Dh, D) * ((Hq * Dh) ** -0.5)),
        }
    _A_in = _A_setup()

    def _B_setup():
        B, S, D, F = 4, 1, 512, 1792
        return {
            "x": _w((lambda *s: torch.randn(*s, dtype=torch.bfloat16) * 0.1)(B, S, D)),
            "w1": _w((lambda *s: torch.randn(*s, dtype=torch.bfloat16) * 3.2)(D, F) * (D ** -0.5)),
            "b1": _w((lambda *s: torch.randn(*s, dtype=torch.bfloat16) * 3.2)(F)),
            "w2": _w((lambda *s: torch.randn(*s, dtype=torch.bfloat16) * 3.2)(F, D) * (F ** -0.5)),
            "b2": _w((lambda *s: torch.randn(*s, dtype=torch.bfloat16) * 3.2)(D)),
        }
    _B_in = _B_setup()

    return {
        "A_x": _A_in["x"],
        "A_k_cache": _A_in["k_cache"],
        "A_v_cache": _A_in["v_cache"],
        "A_wq": _A_in["wq"],
        "A_wo": _A_in["wo"],
        "B_x": _B_in["x"],
        "B_w1": _B_in["w1"],
        "B_b1": _B_in["b1"],
        "B_w2": _B_in["w2"],
        "B_b2": _B_in["b2"],
    }

def reference(A_x, A_k_cache, A_v_cache, A_wq, A_wo, B_x, B_w1, B_b1, B_w2, B_b2):
    def _A_ref(x, k_cache, v_cache, wq, wo):
        B, Sq, D = x.shape
        Hq, Dh = 32, 128
        Hkv = k_cache.shape[1]
        rep = Hq // Hkv
        q = (lambda x, *d: x.permute(*d))((x @ wq).reshape(B, Sq, Hq, Dh), 0, 2, 1, 3)
        k = (lambda x, n, axis: torch.repeat_interleave(x, n, dim=axis))(k_cache, rep, axis=1)
        v = (lambda x, n, axis: torch.repeat_interleave(x, n, dim=axis))(v_cache, rep, axis=1)
        scores = torch.einsum("bhqd,bhkd->bhqk", q, k) * (Dh ** -0.5)
        p = _softmax(scores, axis=-1)
        o = torch.einsum("bhqk,bhkd->bhqd", p, v)
        return (lambda x, *d: x.permute(*d))(o, 0, 2, 1, 3).reshape(B, Sq, Hq * Dh) @ wo

    def _B_ref(x, w1, b1, w2, b2):
        y = _layernorm(x, axis=-1)
        h = _gelu(torch.einsum("bsd,df->bsf", y, w1) + b1)
        return torch.einsum("bsf,fd->bsd", h, w2) + b2

    x = A_x
    xn = _layernorm(x, axis=-1)
    s = _A_ref(xn, A_k_cache, A_v_cache, A_wq, A_wo)
    g = _silu(_B_ref(xn, B_w1, B_b1, B_w2, B_b2))
    return x + s * g
```

```python
import re

TRANS = ("v_exp_f32", "v_log_f32", "v_rcp_f32", "v_rsq_f32", "v_sqrt_f32", "v_sin_f32", "v_cos_f32", "v_rcp_iflag_f32")

def _regs(tok):
    tok = tok.strip()
    neg = tok.startswith("-")
    if neg: tok = tok[1:]
    if tok.startswith("abs(") and tok.endswith(")"): tok = tok[4:-1]
    if tok.startswith("|") and tok.endswith("|"): tok = tok[1:-1]
    m = re.fullmatch(r"([vs])(\d+)", tok)
    if m: return [(m.group(1), int(m.group(2)))]
    m = re.fullmatch(r"([vs])\[(\d+):(\d+)\]", tok)
    if m: return [(m.group(1), i) for i in range(int(m.group(2)), int(m.group(3)) + 1)]
    if tok in ("vcc", "vcc_lo", "vcc_hi"): return [("x", "vcc")]
    if tok in ("exec", "exec_lo", "exec_hi"): return [("x", "exec")]
    if tok == "m0": return [("x", "m0")]
    return []

def _split_ops(s):
    out, depth, cur = [], 0, ""
    for ch in s:
        if ch in "[(": depth += 1
        if ch in "])": depth -= 1
        if ch == "," and depth == 0:
            out.append(cur); cur = ""
        else:
            cur += ch
    if cur.strip(): out.append(cur)
    return [o.strip() for o in out]

class Asm:
    def __init__(self):
        self.lines = []
        self.pos = 0
        self.w = {}
        self.mfma_c_read = {}
        self.store_data = {}
        self.nops_inserted = 0

    def raw(self, s):
        self.lines.append(s)

    def comment(self, s):
        self.lines.append("    ; " + s)

    def label(self, name):
        self.lines.append(name + ":")
        self.fence()

    def fence(self):
        self._nop(8)
        self.w.clear(); self.mfma_c_read.clear(); self.store_data.clear()

    def _nop(self, n):
        while n > 0:
            k = min(n, 16)
            self.lines.append(f"    s_nop {k-1}")
            self.pos += k
            n -= k

    def __call__(self, line):
        for l in line.strip().split("\n"):
            l = l.strip()
            if l: self._emit(l)

    def _emit(self, line):
        code = line.split(";")[0].strip()
        if not code:
            self.lines.append("    " + line); return
        parts = code.split(None, 1)
        mn = parts[0]
        rest = parts[1] if len(parts) > 1 else ""
        ops = _split_ops(rest)
        mods = ""
        if ops:
            last = ops[-1].split(None, 1)
            if len(last) > 1 and not last[0].startswith("abs"):
                ops[-1] = last[0]; mods = last[1]
        is_mfma = mn.startswith("v_mfma")
        is_valu = mn.startswith("v_") and not is_mfma
        is_salu = mn.startswith("s_")
        is_vmem = mn.startswith("buffer_") or mn.startswith("global_")
        is_ds = mn.startswith("ds_")
        mo = re.search(r"offset:(\d+)", code)
        if mo:
            ov = int(mo.group(1))
            if mn.startswith("buffer_"): assert ov <= 4095, line
            if mn.startswith("global_"): assert ov <= 4095, line
            if is_ds: assert ov <= 65535, line
        is_dpp = is_valu and ("dpp" in mn or "quad_perm" in mods or "row_" in mods)
        is_perm = mn.startswith("v_permlane")
        is_rl = mn.startswith("v_readlane") or mn.startswith("v_readfirstlane")
        is_trans = any(mn.startswith(t) for t in TRANS)
        is_lds_dma = is_vmem and re.search(r"\blds\b", mods + " " + rest) is not None
        dst, src = [], []
        srcA = srcB = srcC = []
        if is_mfma:
            dst = _regs(ops[0]); srcA = _regs(ops[1]); srcB = _regs(ops[2]); srcC = _regs(ops[3])
            src = srcA + srcB + srcC
        elif is_valu:
            dst = _regs(ops[0])
            k = 1
            if mn.startswith("v_add_co") or mn.startswith("v_sub_co") or mn.startswith("v_addc_co") or mn.startswith("v_subb_co") or mn.startswith("v_div_scale") or mn.startswith("v_mad_u64"):
                dst += _regs(ops[1]); k = 2
            for o in ops[k:]: src += _regs(o)
            if is_perm: src += _regs(ops[0]); dst += _regs(ops[1])
            if mn.startswith("v_fmac") or mn.startswith("v_pk_fmac") or mn.startswith("v_dot2c") or is_dpp or mn.startswith("v_writelane"): src += _regs(ops[0])
            if mn.startswith("v_cndmask") and len(ops) == 3: src += [("x", "vcc")]
            if mn.startswith("v_cmpx"): dst += [("x", "exec")]
        elif is_salu:
            if mn in ("s_nop",):
                n = int(ops[0], 0) + 1
                self.lines.append("    " + line); self.pos += n; return
            if mn.startswith("s_cmp") or mn.startswith("s_cbranch") or mn.startswith("s_branch") or mn.startswith("s_waitcnt") or mn in ("s_barrier", "s_endpgm", "s_sleep", "s_setprio") or mn.startswith("s_bitcmp"):
                for o in ops: src += _regs(o)
            else:
                dst = _regs(ops[0])
                for o in ops[1:]: src += _regs(o)
                if "saveexec" in mn: dst += [("x", "exec")]
        elif is_vmem:
            if "store" in mn or (("atomic" in mn)):
                for o in ops: src += _regs(o)
                if "atomic" in mn and re.search(r"\bsc0\b", mods): dst = _regs(ops[0])
            elif is_lds_dma:
                for o in ops: src += _regs(o)
                src += [("x", "m0")]
            else:
                dst = _regs(ops[0])
                for o in ops[1:]: src += _regs(o)
        elif is_ds:
            if mn.startswith("ds_read") or mn.startswith("ds_bpermute") or mn.startswith("ds_permute") or mn.startswith("ds_swizzle"):
                dst = _regs(ops[0])
                for o in ops[1:]: src += _regs(o)
            else:
                for o in ops: src += _regs(o)
        else:
            raise ValueError("unknown instr " + line)

        need = 0
        def req(wpos, n):
            nonlocal need
            have = self.pos - wpos - 1
            if n - have > need: need = n - have
        T = {2: 5, 4: 8, 8: 12, 16: 20}
        TO = {2: 4, 4: 6, 8: 10, 16: 18}
        TW = {2: 1, 4: 3, 8: 7, 16: 15}
        for r in src:
            if r not in self.w: continue
            kind, wp, ex = self.w[r]
            if r[0] == "v":
                if kind in ("valu", "trans"):
                    if is_mfma: req(wp, 2)
                    if is_dpp or is_perm: req(wp, 2)
                    if is_rl: req(wp, 1)
                    if kind == "trans" and is_valu and not is_trans: req(wp, 1)
                    if ex == "opsel" and is_valu: req(wp, 1)
                if kind == "mfma":
                    passes, dregs = ex
                    if is_mfma:
                        if r in srcA or r in srcB: req(wp, T[passes])
                        elif r in srcC:
                            if srcC == dregs and self._passes(mn) == passes: req(wp, 2 if passes == 2 else 0)
                            else: req(wp, TO[passes])
                    else:
                        req(wp, T[passes])
            elif r[0] == "s" or r == ("x", "vcc"):
                if kind in ("valu", "trans"):
                    if is_valu or is_mfma: req(wp, 4 if is_rl else 2)
                    if is_vmem: req(wp, 5)
                    if is_salu: req(wp, 1)
            elif r == ("x", "m0"):
                if kind == "salu" and is_lds_dma: req(wp, 1)
            elif r == ("x", "exec"):
                pass
        for r in dst:
            if r[0] == "v":
                if r in self.w and self.w[r][0] == "mfma" and not is_mfma:
                    req(self.w[r][1], T[self.w[r][2][0]])
                if r in self.w and self.w[r][0] == "mfma" and is_mfma and not (srcC == self.w[r][2][1] and dst == srcC):
                    req(self.w[r][1], T[self.w[r][2][0]])
                if r in self.mfma_c_read and is_valu:
                    p, passes = self.mfma_c_read[r]; req(p, TW[passes])
                if r in self.store_data:
                    req(self.store_data[r], 2)
        if need > 0:
            self._nop(need); self.nops_inserted += need
        self.lines.append("    " + line)
        for r in dst:
            if is_mfma: self.w[r] = ("mfma", self.pos, (self._passes(mn), dst))
            elif is_valu: self.w[r] = ("trans" if is_trans else "valu", self.pos, "opsel" if ("op_sel" in mods or "sdwa" in mn or "sel:" in mods) else None)
            elif is_salu: self.w[r] = ("salu", self.pos, None)
            else: self.w[r] = ("mem", self.pos, None)
        if is_mfma:
            for r in srcC: self.mfma_c_read[r] = (self.pos, self._passes(mn))
        if is_vmem and "store" in mn and ("x4" in mn or "x3" in mn):
            for r in _regs(ops[0]): self.store_data[r] = self.pos
        self.pos += 1
        if mn.startswith("s_cbranch") or mn.startswith("s_branch"):
            pass

    @staticmethod
    def _passes(mn):
        if "32x32x16" in mn or "32x32x8" in mn: return 8
        if "16x16x32" in mn or "16x16x16" in mn: return 4
        if "4x4x4" in mn: return 2
        raise ValueError(mn)

    def text(self):
        return "\n".join(self.lines) + "\n"
```

```python
import struct, math, sys
from asmdsl import Asm

NAME = "recurrent_scan__gqa_block_cached__mixer_channel_mlp__decode"
def f2h(x): return "0x%08x" % struct.unpack("<I", struct.pack("<f", x))[0]

WS_Q = 0
WS_ZP = 64 * 1024
WS_PART = 512 * 1024
WS_SP = 1536 * 1024
WS_SIZE = 536870912
CSCALE = (128 ** -0.5) * math.log2(math.e)
LOG2E = math.log2(math.e)

P_X, P_K, P_V, P_WQ, P_WO, P_BX, P_W1, P_B1, P_W2, P_B2, P_OUT, P_DBG, P_WS = 16, 18, 20, 22, 24, 26, 28, 30, 32, 34, 36, 38, 40

def load_ptrs(a):
    a("s_load_dwordx16 s[16:31], s[0:1], 0")
    a("s_load_dwordx8 s[32:39], s[0:1], 64")
    a("s_load_dwordx2 s[40:41], s[0:1], 96")

def srd(a, d, p, nbytes):
    a(f"s_mov_b32 s{d}, s{p}")
    a(f"s_mov_b32 s{d+1}, s{p+1}")
    a(f"s_mov_b32 s{d+2}, {nbytes}")
    a(f"s_mov_b32 s{d+3}, 0x20000")

def kernel_begin(name):
    return f""".globl {name}
.p2align 8
.type {name},@function
{name}:
"""

def kd(name, vgpr, sgpr=102):
    accum = (vgpr + 3) // 4 * 4
    return f""".amdhsa_kernel {name}
  .amdhsa_next_free_vgpr {vgpr}
  .amdhsa_next_free_sgpr {sgpr}
  .amdhsa_accum_offset {accum}
  .amdhsa_group_segment_fixed_size 0
  .amdhsa_kernarg_size 104
  .amdhsa_user_sgpr_count 2
  .amdhsa_user_sgpr_kernarg_segment_ptr 1
  .amdhsa_system_sgpr_workgroup_id_x 1
.end_amdhsa_kernel
"""

def wave_reduce(a, v, tmp, op):
    for ctrl in ("quad_perm:[1,0,3,2]", "quad_perm:[2,3,0,1]", "row_half_mirror", "row_mirror"):
        a(f"{op}_dpp v{v}, v{v}, v{v} {ctrl} row_mask:0xf bank_mask:0xf")
    xrow_reduce(a, v, tmp, op)

def xrow_reduce(a, v, tmp, op):
    a(f"v_mov_b32 v{tmp}, v{v}")
    a(f"v_permlane16_swap_b32 v{tmp}, v{v}")
    a(f"{op} v{v}, v{tmp}, v{v}")
    a(f"v_mov_b32 v{tmp}, v{v}")
    a(f"v_permlane32_swap_b32 v{tmp}, v{v}")
    a(f"{op} v{v}, v{tmp}, v{v}")

def bf16r(a, dst, src):
    a(f"v_cvt_pk_bf16_f32 v{dst}, v{src}, v{src}")
    a(f"v_lshlrev_b32 v{dst}, 16, v{dst}")

def layernorm8(a, X, T, PK):
    s, t, m, r = T, T + 1, T + 2, T + 3
    a(f"v_add_f32 v{s}, v{X}, v{X+1}")
    for i in range(2, 8): a(f"v_add_f32 v{s}, v{s}, v{X+i}")
    wave_reduce(a, s, t, "v_add_f32")
    a(f"v_mul_f32 v{s}, {f2h(1.0/512)}, v{s}")
    a(f"v_sub_f32 v{t}, v{X}, v{s}")
    a(f"v_mul_f32 v{r}, v{t}, v{t}")
    for i in range(1, 8):
        a(f"v_sub_f32 v{t}, v{X+i}, v{s}")
        a(f"v_fmac_f32 v{r}, v{t}, v{t}")
    wave_reduce(a, r, t, "v_add_f32")
    a(f"v_mul_f32 v{r}, {f2h(1.0/512)}, v{r}")
    bf16r(a, m, s)
    bf16r(a, r, r)
    a(f"v_add_f32 v{r}, {f2h(1e-5)}, v{r}")
    bf16r(a, r, r)
    a(f"v_sqrt_f32 v{r}, v{r}")
    bf16r(a, r, r)
    a(f"v_rcp_f32 v{r}, v{r}")
    for i in range(0, 8, 2):
        a(f"v_sub_f32 v{X+i}, v{X+i}, v{m}")
        a(f"v_sub_f32 v{X+i+1}, v{X+i+1}, v{m}")
        a(f"v_cvt_pk_bf16_f32 v{t}, v{X+i}, v{X+i+1}")
        a(f"v_lshlrev_b32 v{X+i}, 16, v{t}")
        a(f"v_and_b32 v{X+i+1}, 0xffff0000, v{t}")
        a(f"v_mul_f32 v{X+i}, v{X+i}, v{r}")
        a(f"v_mul_f32 v{X+i+1}, v{X+i+1}, v{r}")
        a(f"v_cvt_pk_bf16_f32 v{PK+i//2}, v{X+i}, v{X+i+1}")
        a(f"v_lshlrev_b32 v{X+i}, 16, v{PK+i//2}")
        a(f"v_and_b32 v{X+i+1}, 0xffff0000, v{PK+i//2}")

def lane_decode(a):
    a("v_lshrrev_b32 v4, 6, v0")
    a("v_and_b32 v1, 63, v0")
    a("v_readfirstlane_b32 s3, v4")
    a("v_lshrrev_b32 v2, 4, v1")
    a("v_and_b32 v3, 15, v1")

def gen_ka():
    a = Asm()
    L_W1, L_W2, L_XN, L_Y, L_RED, L_ACT2 = 0, 65536, 131072, 135168, 139264, 147456
    a("s_cmp_ge_u32 s2, 92")
    a("s_cbranch_scc1 KA_end")
    load_ptrs(a)
    lane_decode(a)
    a("s_waitcnt lgkmcnt(0)")
    srd(a, 44, P_X, 4096)
    srd(a, 48, P_WS, WS_SIZE)
    srd(a, 56, P_W2, 1792 * 512 * 2)
    srd(a, 60, P_B1, 1792 * 2)
    a("s_cmp_lt_u32 s2, 64")
    a(f"s_cselect_b32 s52, s{P_WQ}, s{P_W1}")
    a(f"s_cselect_b32 s53, s{P_WQ+1}, s{P_W1+1}")
    a(f"s_mov_b32 s54, {512*1792*2}")
    a(f"s_cselect_b32 s54, {512*4096*2}, s54")
    a("s_mov_b32 s55, 0x20000")
    a("s_mov_b32 s4, 3584")
    a("s_cselect_b32 s4, 8192, s4")
    a("s_sub_u32 s5, s2, 64")
    a("s_cmp_lt_u32 s2, 64")
    a("s_cselect_b32 s5, s2, s5")
    a(f"s_mov_b32 s6, {L_Y}")
    a(f"s_cselect_b32 s6, {L_XN}, s6")
    a("s_lshl_b32 s7, s5, 7")
    a("s_and_b32 s8, s3, 3")
    a("s_lshl_b32 s9, s8, 10")
    a("v_lshlrev_b32 v5, 4, v1")
    a("buffer_load_dwordx4 v[8:11], v5, s[44:47], s9 offen")
    a("v_lshrrev_b32 v6, 3, v1")
    a("v_mul_lo_u32 v6, v6, s4")
    a("v_and_b32 v7, 7, v1")
    a("v_lshl_add_u32 v6, v7, 4, v6")
    a("s_lshl_b32 s10, s3, 6")
    a("s_mul_i32 s10, s10, s4")
    a("s_add_u32 s10, s10, s7")
    a("s_lshl_b32 s11, s4, 3")
    a("s_lshl_b32 s12, s3, 13")
    for i in range(8):
        a(f"s_add_u32 m0, s12, {L_W1 + i*1024}")
        a(f"buffer_load_dwordx4 v6, s[52:55], s10 offen lds")
        if i < 7: a("s_add_u32 s10, s10, s11")
    a("s_cmp_lt_u32 s2, 64")
    a("s_cbranch_scc1 KA_skipw2")
    a("s_lshl_b32 s13, s5, 6")
    a("s_lshl_b32 s14, s3, 3")
    a("s_add_u32 s13, s13, s14")
    a("s_lshl_b32 s13, s13, 10")
    for i in range(8):
        a(f"s_add_u32 m0, s12, {L_W2 + i*1024}")
        a(f"buffer_load_dwordx4 v5, s[56:59], s13 offen lds")
        if i < 7: a("s_add_u32 s13, s13, 1024")
    a.label("KA_skipw2")
    a("s_waitcnt vmcnt(8)")
    for i in range(4):
        a(f"v_lshlrev_b32 v{16+2*i}, 16, v{8+i}")
        a(f"v_and_b32 v{17+2*i}, 0xffff0000, v{8+i}")
    layernorm8(a, 16, 24, 32)
    a("v_add_u32 v12, s9, v5")
    a(f"ds_write_b128 v12, v[32:35] offset:{L_XN - 65536*1}" if False else f"v_add_u32 v13, {L_XN}, v12")
    a("ds_write_b128 v13, v[32:35]")
    layernorm8(a, 16, 24, 36)
    a(f"ds_write_b128 v13, v[36:39] offset:{L_Y - L_XN}")
    a("s_waitcnt vmcnt(0) lgkmcnt(0)")
    a("s_barrier")
    a("v_and_b32 v14, 3, v1")
    a("v_lshlrev_b32 v14, 10, v14")
    a("v_lshl_add_u32 v14, v2, 3, v14")
    a("s_lshl_b32 s15, s3, 7")
    a("s_add_u32 s15, s15, s6")
    a("v_add_u32 v14, s15, v14")
    a("v_lshrrev_b32 v15, 2, v1")
    a("v_lshlrev_b32 v15, 7, v15")
    a("v_and_b32 v40, 3, v1")
    a("v_lshl_add_u32 v15, v40, 3, v15")
    a("v_add_u32 v15, s12, v15")
    for ks in range(4):
        a(f"ds_read_b64 v[{44+2*ks}:{45+2*ks}], v14 offset:{ks*32}")
    for ks in range(4):
        for nb in range(4):
            r = 52 + (ks * 4 + nb) * 2
            a(f"ds_read_b64_tr_b16 v[{r}:{r+1}], v15 offset:{L_W1 + ks*2048 + nb*32}")
    a("s_waitcnt lgkmcnt(0)")
    D = 84
    for ks in range(4):
        for nb in range(4):
            r = 52 + (ks * 4 + nb) * 2
            c = "0" if ks == 0 else f"v[{D+nb*4}:{D+nb*4+3}]"
            a(f"v_mfma_f32_16x16x16_bf16 v[{D+nb*4}:{D+nb*4+3}], v[{r}:{r+1}], v[{44+2*ks}:{45+2*ks}], {c}")
    a("v_lshlrev_b32 v41, 8, v3")
    a("v_lshl_add_u32 v41, v2, 4, v41")
    a("s_lshl_b32 s15, s3, 10")
    a(f"s_add_u32 s15, s15, {L_RED}")
    a("v_add_u32 v41, s15, v41")
    a("v_cmp_gt_u32 vcc, 4, v3")
    a("s_and_saveexec_b64 s[62+2:62+3], vcc".replace("62+2", "64").replace("62+3", "65"))
    for nb in range(4):
        a(f"ds_write_b128 v41, v[{D+nb*4}:{D+nb*4+3}] offset:{nb*64}")
    a("s_mov_b64 exec, s[64:65]")
    a("s_waitcnt lgkmcnt(0)")
    a("s_barrier")
    a("v_lshlrev_b32 v42, 2, v1")
    a("s_lshl_b32 s15, s8, 8")
    a(f"s_add_u32 s15, s15, {L_RED}")
    a("v_add_u32 v42, s15, v42")
    for w in range(8):
        a(f"ds_read_b32 v{44+w}, v42 offset:{w*1024}")
    a("s_waitcnt lgkmcnt(0)")
    for w in range(1, 8):
        a(f"v_add_f32 v44, v44, v{44+w}")
    a("s_cmp_lt_u32 s2, 64")
    a("s_cbranch_scc0 KA_mlp")
    a("v_cvt_pk_bf16_f32 v45, v44, v44")
    a("v_lshlrev_b32 v46, 1, v1")
    a("s_lshl_b32 s15, s8, 13")
    a("s_add_u32 s15, s15, s7")
    a(f"s_add_u32 s15, s15, {WS_Q}")
    a("buffer_store_short v45, v46, s[48:51], s15 offen")
    a("s_branch KA_end")
    a.label("KA_mlp")
    a("v_lshlrev_b32 v46, 1, v1")
    a("buffer_load_ushort v47, v46, s[60:63], s7 offen")
    bf16r(a, 44, 44)
    a("s_waitcnt vmcnt(0)")
    a("v_lshlrev_b32 v47, 16, v47")
    a("v_add_f32 v44, v44, v47")
    bf16r(a, 44, 44)
    k1 = -2.0 * LOG2E * math.sqrt(2.0 / math.pi)
    a("v_mul_f32 v45, v44, v44")
    a(f"v_mul_f32 v45, {f2h(0.044715)}, v45")
    a("v_fma_f32 v45, v45, v44, v44")
    a(f"v_mul_f32 v45, {f2h(k1)}, v45")
    a("v_exp_f32 v45, v45")
    a("v_add_f32 v45, 1.0, v45")
    a("v_rcp_f32 v45, v45")
    a("v_mul_f32 v44, v44, v45")
    a("v_cvt_pk_bf16_f32 v45, v44, v44")
    a("s_lshl_b32 s15, s8, 7")
    a(f"s_add_u32 s15, s15, {L_ACT2}")
    a("v_add_u32 v46, s15, v46")
    a("ds_write_b16 v46, v45")
    a("s_waitcnt lgkmcnt(0)")
    a("s_barrier")
    a("v_and_b32 v14, 3, v1")
    a("v_lshlrev_b32 v14, 7, v14")
    a("v_lshl_add_u32 v14, v2, 3, v14")
    a(f"v_add_u32 v14, {L_ACT2}, v14")
    a("v_lshrrev_b32 v15, 2, v1")
    a("v_lshlrev_b32 v15, 10, v15")
    a("v_lshl_add_u32 v15, v40, 3, v15")
    a("s_lshl_b32 s15, s3, 7")
    a(f"s_add_u32 s15, s15, {L_W2}")
    a("v_add_u32 v15, s15, v15")
    for ks in range(4):
        a(f"ds_read_b64 v[{44+2*ks}:{45+2*ks}], v14 offset:{ks*32}")
    for ks in range(4):
        for nb in range(4):
            r = 52 + (ks * 4 + nb) * 2
            a(f"ds_read_b64_tr_b16 v[{r}:{r+1}], v15 offset:{ks*16384 + nb*32}")
    a("s_waitcnt lgkmcnt(0)")
    for ks in range(4):
        for nb in range(4):
            r = 52 + (ks * 4 + nb) * 2
            c = "0" if ks == 0 else f"v[{D+nb*4}:{D+nb*4+3}]"
            a(f"v_mfma_f32_16x16x16_bf16 v[{D+nb*4}:{D+nb*4+3}], v[{r}:{r+1}], v[{44+2*ks}:{45+2*ks}], {c}")
    a("v_lshlrev_b32 v41, 11, v3")
    a("v_lshl_add_u32 v41, v2, 4, v41")
    a("s_lshl_b32 s15, s5, 13")
    a("s_lshl_b32 s14, s3, 8")
    a("s_add_u32 s15, s15, s14")
    a(f"s_add_u32 s15, s15, {WS_ZP}")
    a("v_cmp_gt_u32 vcc, 4, v3")
    a("s_and_saveexec_b64 s[64:65], vcc")
    for nb in range(4):
        a(f"buffer_store_dwordx4 v[{D+nb*4}:{D+nb*4+3}], v41, s[48:51], s15 offen offset:{nb*64}")
    a("s_mov_b64 exec, s[64:65]")
    a.label("KA_end")
    a("s_endpgm")
    return kernel_begin("ka_kernel") + a.text(), kd("ka_kernel", 104), 148 * 1024

def gen_kb():
    a = Asm()
    a("s_cmp_ge_u32 s2, 256")
    a("s_cbranch_scc1 KB_end")
    load_ptrs(a)
    lane_decode(a)
    a("s_waitcnt lgkmcnt(0)")
    srd(a, 44, P_K, 128 << 20)
    srd(a, 48, P_V, 128 << 20)
    srd(a, 52, P_WS, WS_SIZE)
    a("s_lshr_b32 s4, s2, 3")
    a("s_and_b32 s5, s2, 7")
    a("s_lshr_b32 s6, s4, 3")
    a("s_and_b32 s7, s4, 7")
    a("s_lshl_b32 s8, s2, 19")
    a("s_lshl_b32 s9, s3, 12")
    a("s_add_u32 s8, s8, s9")
    a("s_lshl_b32 s10, s3, 14")
    VK, VV, RK, RV = 8, 12, 14, 18
    a("v_xor_b32 v5, v3, v2")
    for i in range(4):
        a(f"v_xor_b32 v6, {4*i}, v5")
        a("v_lshlrev_b32 v6, 4, v6")
        a(f"v_lshl_add_u32 v{VK+i}, v2, 8, v6")
    for i in range(2):
        a(f"v_add_u32 v6, {4*i}, v2")
        a("v_lshlrev_b32 v6, 1, v6")
        a("v_xor_b32 v6, v6, v3")
        a("v_lshlrev_b32 v6, 4, v6")
        a(f"v_lshl_add_u32 v{VV+i}, v2, 8, v6")
    def issue(slot):
        a(f"s_add_u32 m0, s10, {slot*8192}")
        for i in range(4):
            a(f"buffer_load_dwordx4 v{VK+i}, s[44:47], s8 offen offset:{i*1024} nt lds")
        a(f"s_add_u32 m0, s10, {slot*8192 + 4096}")
        for i in range(4):
            a(f"buffer_load_dwordx4 v{VV+(i&1)}, s[48:51], s8 offen offset:{i*1024} nt lds")
        a("s_add_u32 s8, s8, 32768")
    issue(0)
    issue(1)
    Q = 32
    a("v_and_b32 v6, 3, v1")
    a("v_lshlrev_b32 v6, 8, v6")
    a("v_lshl_add_u32 v6, v2, 4, v6")
    a("s_lshl_b32 s11, s6, 13")
    a("s_lshl_b32 s12, s7, 10")
    a("s_add_u32 s11, s11, s12")
    a(f"s_add_u32 s11, s11, {WS_Q}")
    for s in range(4):
        a(f"buffer_load_dwordx4 v[{Q+4*s}:{Q+4*s+3}], v6, s[52:55], s11 offen offset:{s*64}")
    for s in range(4):
        a(f"v_xor_b32 v6, {4*s}, v5")
        a("v_lshlrev_b32 v6, 4, v6")
        a("v_lshl_add_u32 v6, v3, 8, v6")
        a(f"v_add_u32 v{RK+s}, s10, v6")
    a("v_lshrrev_b32 v6, 2, v1")
    a("v_and_b32 v7, 7, v6")
    a("v_lshlrev_b32 v6, 8, v6")
    a("v_and_b32 v26, 3, v1")
    a("v_lshl_add_u32 v6, v26, 3, v6")
    a("v_add_u32 v6, s10, v6")
    for t in range(8):
        a(f"v_xor_b32 v27, {t}, v7")
        a(f"v_lshl_add_u32 v{RV+t}, v27, 5, v6")
    O, KF, VF, S = 48, 80, 96, 112
    M, Lr, T0, T1, AL, NM, P = 116, 117, 118, 119, 120, 121, 122
    for i in range(32): a(f"v_mov_b32 v{O+i}, 0")
    a(f"v_mov_b32 v{M}, {f2h(-3.0e38)}")
    a(f"v_mov_b32 v{Lr}, 0")
    a(f"s_mov_b32 s13, {f2h(CSCALE)}")
    a("s_waitcnt vmcnt(0)")
    def unit(slot, do_issue, wait):
        a(f"s_waitcnt vmcnt({wait})")
        for s in range(4):
            a(f"ds_read_b128 v[{KF+4*s}:{KF+4*s+3}], v{RK+s} offset:{slot*8192}")
        for t in range(8):
            a(f"ds_read_b64_tr_b16 v[{VF+2*t}:{VF+2*t+1}], v{RV+t} offset:{slot*8192+4096}")
        a("s_waitcnt lgkmcnt(8)")
        for s in range(4):
            c = "0" if s == 0 else f"v[{S}:{S+3}]"
            a(f"v_mfma_f32_16x16x32_bf16 v[{S}:{S+3}], v[{KF+4*s}:{KF+4*s+3}], v[{Q+4*s}:{Q+4*s+3}], {c}")
        a("s_waitcnt lgkmcnt(0)")
        if do_issue: issue(slot)
        a(f"v_max3_f32 v{T0}, v{S}, v{S+1}, v{S+2}")
        a(f"v_max_f32 v{T0}, v{T0}, v{S+3}")
        xrow_reduce(a, T0, T1, "v_max_f32")
        a(f"v_max_f32 v{T0}, v{T0}, v{M}")
        a(f"v_sub_f32 v{AL}, v{M}, v{T0}")
        a(f"v_mul_f32 v{AL}, s13, v{AL}")
        a(f"v_exp_f32 v{AL}, v{AL}")
        a(f"v_mov_b32 v{M}, v{T0}")
        a(f"v_mul_f32 v{NM}, s13, v{T0}")
        for r in range(4):
            a(f"v_fma_f32 v{S+r}, v{S+r}, s13, -v{NM}")
        for r in range(4):
            a(f"v_exp_f32 v{S+r}, v{S+r}")
        a(f"v_add_f32 v{T0}, v{S}, v{S+1}")
        a(f"v_add_f32 v{T1}, v{S+2}, v{S+3}")
        a(f"v_add_f32 v{T0}, v{T0}, v{T1}")
        a(f"v_fma_f32 v{Lr}, v{Lr}, v{AL}, v{T0}")
        a(f"v_cvt_pk_bf16_f32 v{P}, v{S}, v{S+1}")
        a(f"v_cvt_pk_bf16_f32 v{P+1}, v{S+2}, v{S+3}")
        for i in range(32): a(f"v_mul_f32 v{O+i}, v{O+i}, v{AL}")
        for t in range(8):
            a(f"v_mfma_f32_16x16x16_bf16 v[{O+4*t}:{O+4*t+3}], v[{VF+2*t}:{VF+2*t+1}], v[{P}:{P+1}], v[{O+4*t}:{O+4*t+3}]")
    a("s_mov_b32 s14, 0")
    a.label("KB_loop")
    unit(0, True, 8)
    unit(1, True, 8)
    a("s_add_u32 s14, s14, 1")
    a("s_cmp_lt_u32 s14, 7")
    a("s_cbranch_scc1 KB_loop")
    unit(0, False, 8)
    unit(1, False, 0)
    xrow_reduce(a, Lr, T1, "v_add_f32")
    a("v_lshlrev_b32 v6, 9, v3")
    a("v_lshl_add_u32 v6, v2, 4, v6")
    a("v_add_u32 v6, s10, v6")
    a("v_lshlrev_b32 v7, 3, v3")
    a("v_add_u32 v7, s10, v7")
    a("v_cmp_gt_u32 vcc, 4, v3")
    a("s_and_saveexec_b64 s[64:65], vcc")
    for t in range(8):
        a(f"ds_write_b128 v6, v[{O+4*t}:{O+4*t+3}] offset:{t*64}")
    a(f"ds_write_b64 v7, v[{M}:{M+1}] offset:2048")
    a("s_mov_b64 exec, s[64:65]")
    a("s_waitcnt lgkmcnt(0)")
    a("s_barrier")
    a("v_lshrrev_b32 v6, 7, v0")
    a("v_and_b32 v7, 127, v0")
    a("v_lshlrev_b32 v8, 9, v6")
    a("v_lshl_add_u32 v8, v7, 2, v8")
    a("v_lshlrev_b32 v9, 3, v6")
    a("v_add_u32 v24, 0x10000, v8")
    a("v_add_u32 v25, 0x10000, v9")
    for w in range(8):
        a(f"ds_read_b32 v{16+w}, v{8 if w < 4 else 24} offset:{(w&3)*16384}")
        a(f"ds_read_b64 v[{32+2*w}:{33+2*w}], v{9 if w < 4 else 25} offset:{(w&3)*16384+2048}")
    a("s_waitcnt lgkmcnt(0)")
    a("v_max3_f32 v10, v32, v34, v36")
    a("v_max3_f32 v10, v10, v38, v40")
    a("v_max3_f32 v10, v10, v42, v44")
    a("v_max_f32 v10, v10, v46")
    a("v_mov_b32 v11, 0")
    a("v_mov_b32 v12, 0")
    for w in range(8):
        a(f"v_sub_f32 v13, v{32+2*w}, v10")
        a("v_mul_f32 v13, s13, v13")
        a("v_exp_f32 v13, v13")
        a(f"v_fmac_f32 v11, v13, v{16+w}")
        a(f"v_fmac_f32 v12, v13, v{33+2*w}")
    a("s_mov_b32 s15, 4224")
    a("v_mul_lo_u32 v14, v6, s15")
    a("v_lshl_add_u32 v15, v7, 2, v14")
    a("s_mul_i32 s15, s4, 16896")
    a("s_mul_i32 s12, s5, 528")
    a("s_add_u32 s15, s15, s12")
    a(f"s_add_u32 s15, s15, {WS_PART}")
    a("buffer_store_dword v11, v15, s[52:55], s15 offen")
    a("v_mul_f32 v10, s13, v10")
    a("v_mov_b32 v11, v12")
    a("v_cmp_eq_u32 vcc, 0, v7")
    a("s_and_saveexec_b64 s[64:65], vcc")
    a("buffer_store_dwordx2 v[10:11], v14, s[52:55], s15 offen offset:512")
    a("s_mov_b64 exec, s[64:65]")
    a.label("KB_end")
    a("s_endpgm")
    return kernel_begin("kb_kernel") + a.text(), kd("kb_kernel", 128), 128 * 1024

def gen_kc():
    a = Asm()
    L_W, L_ACT, L_RED = 0, 16384, 20480
    a("s_cmp_ge_u32 s2, 256")
    a("s_cbranch_scc1 KC_end")
    load_ptrs(a)
    lane_decode(a)
    a("s_waitcnt lgkmcnt(0)")
    srd(a, 44, P_WO, 4096 * 512 * 2)
    srd(a, 52, P_WS, WS_SIZE)
    a("s_lshr_b32 s4, s2, 3")
    a("s_and_b32 s5, s2, 7")
    a("v_lshrrev_b32 v6, 3, v1")
    a("v_lshlrev_b32 v6, 10, v6")
    a("v_and_b32 v7, 7, v1")
    a("v_lshl_add_u32 v6, v7, 4, v6")
    a("s_lshl_b32 s6, s4, 7")
    a("s_lshl_b32 s7, s3, 4")
    a("s_add_u32 s6, s6, s7")
    a("s_lshl_b32 s6, s6, 10")
    a("s_lshl_b32 s7, s5, 7")
    a("s_add_u32 s6, s6, s7")
    a("s_lshl_b32 s8, s3, 11")
    a(f"s_add_u32 m0, s8, {L_W}")
    a("buffer_load_dwordx4 v6, s[44:47], s6 offen lds")
    a("s_add_u32 s6, s6, 8192")
    a(f"s_add_u32 m0, s8, {L_W + 1024}")
    a("buffer_load_dwordx4 v6, s[44:47], s6 offen lds")
    a("v_lshrrev_b32 v8, 7, v0")
    a("v_and_b32 v9, 127, v0")
    a("s_mov_b32 s9, 135168")
    a("v_mul_lo_u32 v10, v8, s9")
    a("v_lshl_add_u32 v11, v9, 2, v10")
    a("v_add_u32 v10, 512, v10")
    a("s_mul_i32 s9, s4, 4224")
    a(f"s_add_u32 s9, s9, {WS_PART}")
    for sp in range(8):
        a(f"buffer_load_dword v{16+sp}, v11, s[52:55], s9 offen offset:{sp*528}")
        a(f"buffer_load_dwordx2 v[{32+2*sp}:{33+2*sp}], v10, s[52:55], s9 offen offset:{sp*528}")
    a("s_waitcnt vmcnt(0)")
    a("v_max3_f32 v12, v32, v34, v36")
    a("v_max3_f32 v12, v12, v38, v40")
    a("v_max3_f32 v12, v12, v42, v44")
    a("v_max_f32 v12, v12, v46")
    a("v_mov_b32 v13, 0")
    a("v_mov_b32 v14, 0")
    for sp in range(8):
        a(f"v_sub_f32 v15, v{32+2*sp}, v12")
        a("v_exp_f32 v15, v15")
        a(f"v_fmac_f32 v13, v15, v{16+sp}")
        a(f"v_fmac_f32 v14, v15, v{33+2*sp}")
    a("v_rcp_f32 v14, v14")
    a("v_mul_f32 v13, v13, v14")
    a("v_cvt_pk_bf16_f32 v13, v13, v13")
    a("v_lshlrev_b32 v15, 1, v0")
    a(f"ds_write_b16 v15, v13 offset:{L_ACT}")
    a("s_waitcnt lgkmcnt(0)")
    a("s_barrier")
    a("v_and_b32 v14, 3, v1")
    a("v_lshlrev_b32 v16, 8, v14")
    a("v_lshl_add_u32 v16, v2, 3, v16")
    a("s_lshl_b32 s9, s3, 5")
    a("v_add_u32 v16, s9, v16")
    a(f"ds_read_b64 v[20:21], v16 offset:{L_ACT}")
    a("v_lshrrev_b32 v17, 2, v1")
    a("v_lshlrev_b32 v17, 7, v17")
    a("v_lshl_add_u32 v17, v14, 3, v17")
    a("v_add_u32 v17, s8, v17")
    for nb in range(4):
        a(f"ds_read_b64_tr_b16 v[{22+2*nb}:{23+2*nb}], v17 offset:{L_W + nb*32}")
    a("s_waitcnt lgkmcnt(0)")
    D = 32
    for nb in range(4):
        a(f"v_mfma_f32_16x16x16_bf16 v[{D+4*nb}:{D+4*nb+3}], v[{22+2*nb}:{23+2*nb}], v[20:21], 0")
    a("v_lshlrev_b32 v18, 8, v3")
    a("v_lshl_add_u32 v18, v2, 4, v18")
    a("s_lshl_b32 s9, s3, 10")
    a("v_add_u32 v18, s9, v18")
    a("v_cmp_gt_u32 vcc, 4, v3")
    a("s_and_saveexec_b64 s[64:65], vcc")
    for nb in range(4):
        a(f"ds_write_b128 v18, v[{D+4*nb}:{D+4*nb+3}] offset:{L_RED + nb*64}")
    a("s_mov_b64 exec, s[64:65]")
    a("s_waitcnt lgkmcnt(0)")
    a("s_barrier")
    a("s_and_b32 s10, s3, 3")
    a("v_lshlrev_b32 v19, 2, v1")
    a("s_lshl_b32 s9, s10, 8")
    a("v_add_u32 v20, s9, v19")
    for w in range(8):
        a(f"ds_read_b32 v{24+w}, v20 offset:{L_RED + w*1024}")
    a("s_waitcnt lgkmcnt(0)")
    for w in range(1, 8):
        a(f"v_add_f32 v24, v24, v{24+w}")
    a("s_lshl_b32 s9, s5, 5")
    a("s_add_u32 s9, s9, s4")
    a("s_lshl_b32 s9, s9, 10")
    a(f"s_add_u32 s9, s9, {WS_SP}")
    a("buffer_store_dword v24, v20, s[52:55], s9 offen")
    a.label("KC_end")
    a("s_endpgm")
    return kernel_begin("kc_kernel") + a.text(), kd("kc_kernel", 64), 32 * 1024

def gen_kd():
    a = Asm()
    a("s_cmp_ge_u32 s2, 8")
    a("s_cbranch_scc1 KD_end")
    load_ptrs(a)
    lane_decode(a)
    a("s_waitcnt lgkmcnt(0)")
    srd(a, 44, P_X, 4096)
    srd(a, 48, P_OUT, 4096)
    srd(a, 52, P_WS, WS_SIZE)
    srd(a, 56, P_B2, 1024)
    a("v_lshlrev_b32 v5, 2, v1")
    a("v_lshlrev_b32 v6, 1, v1")
    a("s_lshl_b32 s4, s2, 15")
    a("s_lshl_b32 s5, s3, 8")
    a("s_add_u32 s4, s4, s5")
    a(f"s_add_u32 s4, s4, {WS_SP}")
    for hq in range(32):
        if hq % 4 == 0 and hq: a("s_add_u32 s4, s4, 4096")
        a(f"buffer_load_dword v{16+hq}, v5, s[52:55], s4 offen offset:{(hq%4)*1024}")
    a("s_lshl_b32 s6, s3, 11")
    a("s_lshl_b32 s7, s2, 8")
    a("s_add_u32 s6, s6, s7")
    a(f"s_add_u32 s6, s6, {WS_ZP}")
    for p in range(28):
        a(f"buffer_load_dword v{48+p}, v5, s[52:55], s6 offen")
        if p < 27: a("s_add_u32 s6, s6, 8192")
    a("s_lshl_b32 s8, s2, 7")
    a("buffer_load_ushort v8, v6, s[56:59], s8 offen")
    a("s_lshl_b32 s9, s3, 10")
    a("s_add_u32 s9, s9, s8")
    a("buffer_load_ushort v9, v6, s[44:47], s9 offen")
    a("s_waitcnt vmcnt(0)")
    for hq in range(1, 32): a(f"v_add_f32 v16, v16, v{16+hq}")
    for p in range(1, 28): a(f"v_add_f32 v48, v48, v{48+p}")
    bf16r(a, 16, 16)
    bf16r(a, 48, 48)
    a("v_lshlrev_b32 v8, 16, v8")
    a("v_lshlrev_b32 v9, 16, v9")
    a("v_add_f32 v48, v48, v8")
    bf16r(a, 48, 48)
    a(f"v_mul_f32 v10, {f2h(-LOG2E)}, v48")
    a("v_exp_f32 v10, v10")
    a("v_add_f32 v10, 1.0, v10")
    a("v_rcp_f32 v10, v10")
    a("v_mul_f32 v48, v48, v10")
    bf16r(a, 48, 48)
    a("v_mul_f32 v16, v16, v48")
    bf16r(a, 16, 16)
    a("v_add_f32 v16, v16, v9")
    a("v_cvt_pk_bf16_f32 v16, v16, v16")
    a("buffer_store_short v16, v6, s[48:51], s9 offen")
    a.label("KD_end")
    a("s_endpgm")
    return kernel_begin("kd_kernel") + a.text(), kd("kd_kernel", 80), 0

def main(out):
    ka, kda, ldsa = gen_ka()
    kb, kdb, ldsb = gen_kb()
    kc, kdc, ldsc = gen_kc()
    kdd, kddd, ldsd = gen_kd()
    s = f"""; @launch kernel=ka_kernel grid=(92,1,1) block=(512,1,1) lds={ldsa}
; @launch kernel=kb_kernel grid=(256,1,1) block=(512,1,1) lds={ldsb}
; @launch kernel=kc_kernel grid=(256,1,1) block=(512,1,1) lds={ldsc}
; @launch kernel=kd_kernel grid=(8,1,1) block=(256,1,1) lds={ldsd}
.amdgcn_target "amdgcn-amd-amdhsa--gfx950"
.text
""" + ka + kb + kc + kdd + """.section .rodata,"a"
.p2align 6
""" + kda + ".p2align 6\n" + kdb + ".p2align 6\n" + kdc + ".p2align 6\n" + kddd
    open(out, "w").write(s)

if __name__ == "__main__":
    main(sys.argv[1] if len(sys.argv) > 1 else "v1.s")
```

```python
import struct, math, sys
from asmdsl import Asm
from gen_v1 import *

KN = NAME + "_kernel"
L_WO, L_XN, L_Y, L_RED = 131072, 147456, 151552, 155648
L_Q = L_XN
L_ACT2 = L_XN + 2048
L_OACT = L_XN + 3072
L_S3 = L_Y
SPIN_MAX = 1 << 20
WS_TS = 4 << 20
WS_EPOCH = 3 << 20
WS_QG = 2 << 20

def gen(opts=None):
    opts = opts or {}
    STAMP = opts.get("stamp", 0)
    PSLEEP = opts.get("psleep", 4)
    PRE3 = opts.get("pre3", 1)
    NV = 168
    POL = {"nt": " nt", "def": "", "sc1": " sc1", "sc0sc1": " sc0 sc1"}
    KPOL = POL[opts.get("kpol", "nt")]; VPOL = POL[opts.get("vpol", "nt")]; WPOL = POL[opts.get("wpol", "nt")]
    VST = 164
    a = Asm()
    RK_, RV_, RWS, RW, RX, RW2, RWO, RDBG, RB, ROUT = 44, 48, 52, 56, 60, 64, 68, 72, 76, 80
    def S(r): return f"s[{r}:{r+3}]"
    def stamp(idx):
        if not STAMP: return
        a("s_memrealtime s[96:97]")
        a("s_waitcnt lgkmcnt(0)")
        a(f"v_writelane_b32 v{VST}, s96, {idx}")
    a("s_cmp_ge_u32 s2, 256")
    a("s_cbranch_scc1 L_exit")
    if STAMP: a(f"v_mov_b32 v{VST}, 0")
    stamp(0)
    load_ptrs(a)
    lane_decode(a)
    a("s_lshr_b32 s4, s2, 3")
    a("s_and_b32 s5, s2, 7")
    a("s_lshr_b32 s6, s4, 3")
    a("s_and_b32 s7, s4, 7")
    a("s_lshl_b32 s10, s3, 14")
    VK, VV, RK, RV, VW, VL16 = 8, 12, 14, 18, 26, 27
    VI0, VI1, VI2, VZ = 28, 29, 30, 31
    a(f"v_lshlrev_b32 v{VL16}, 4, v1")
    a("v_lshrrev_b32 v6, 3, v1")
    a("v_and_b32 v7, 7, v1")
    a("v_lshlrev_b32 v7, 4, v7")
    a(f"v_lshl_add_u32 v{VW}, v6, 10, v7")
    a("s_sub_u32 s100, s5, s4")
    a("s_and_b32 s100, s100, 7")
    a("s_cmp_lt_u32 s4, 28")
    a("s_cselect_b32 s98, 2, 0")
    a("s_cmp_eq_u32 s100, 2")
    a("s_cselect_b32 s98, s98, 0")
    a("s_cmp_lt_u32 s100, 2")
    a("s_cselect_b32 s98, 1, s98")
    a("s_lshl_b32 s89, s4, 1")
    a("s_add_u32 s89, s89, s100")
    a("s_mov_b32 s90, 3584")
    a(f"s_mov_b32 s91, {L_Y}")
    a(f"s_mov_b32 s{RW+2}, {512*1792*2}")
    a("s_cmp_eq_u32 s98, 1")
    a("s_cselect_b32 s89, s89, s4")
    a("s_cselect_b32 s90, 8192, s90")
    a(f"s_cselect_b32 s91, {L_XN}, s91")
    a(f"s_cselect_b32 s{RW+2}, {512*4096*2}, s{RW+2}")
    a(f"s_mov_b32 s{RW+3}, 0x20000")
    a("s_lshl_b32 s92, s89, 7")
    a("v_mul_lo_u32 v6, v6, s90")
    a("v_add_u32 v6, v6, v7")
    a("s_and_b32 s93, s3, 3")
    a("s_lshl_b32 s94, s93, 10")
    a("s_lshl_b32 s9, s3, 6")
    a("s_mul_i32 s9, s9, s90")
    a("s_add_u32 s9, s9, s92")
    a("s_lshl_b32 s11, s90, 3")
    a("v_lshlrev_b32 v7, 1, v1")
    a("s_waitcnt lgkmcnt(0)")
    a("s_cmp_eq_u32 s98, 1")
    a(f"s_cselect_b32 s{RW}, s{P_WQ}, s{P_W1}")
    a(f"s_cselect_b32 s{RW+1}, s{P_WQ+1}, s{P_W1+1}")
    srd(a, RX, P_X, 4096)
    srd(a, RB, P_B1, 1792 * 2)
    srd(a, RW2, P_W2, 1792 * 512 * 2)
    a("s_cmp_eq_u32 s3, 8")
    a("s_cbranch_scc1 L_setup")
    a("s_cmp_eq_u32 s98, 0")
    a("s_cbranch_scc1 L_setup")
    a(f"buffer_load_dwordx4 v[48:51], v{VL16}, {S(RX)}, s94 offen")
    a(f"buffer_load_ushort v52, v7, {S(RB)}, s92 offen")
    for i in range(8):
        a(f"s_add_u32 m0, s10, {8192 + i*1024}")
        a(f"buffer_load_dwordx4 v6, {S(RW)}, s9 offen{WPOL} lds")
        if i < 7: a("s_add_u32 s9, s9, s11")
    a("s_cmp_eq_u32 s98, 1")
    a("s_cbranch_scc1 L_setup")
    a("s_lshl_b32 s9, s89, 16")
    a("s_lshl_b32 s11, s3, 7")
    a("s_add_u32 s9, s9, s11")
    for i in range(8):
        a(f"s_add_u32 m0, s10, {i*1024}")
        a(f"buffer_load_dwordx4 v{VW}, {S(RW2)}, s9 offen{WPOL} lds")
        if i < 7: a("s_add_u32 s9, s9, 8192")
    a.label("L_setup")
    stamp(10)
    srd(a, RK_, P_K, 128 << 20)
    srd(a, RV_, P_V, 128 << 20)
    srd(a, RWS, P_WS, WS_SIZE)
    srd(a, RWO, P_WO, 4096 * 512 * 2)
    srd(a, RDBG, P_DBG, 256)
    srd(a, ROUT, P_OUT, 4096)
    a("s_cmp_eq_u32 s3, 8")
    a("s_cbranch_scc1 L_helper")
    NQ, NM_ = opts.get("nq", 16), opts.get("nm", 16)
    def mk(counts):
        starts = [sum(counts[:i]) for i in range(8)]
        pk = lambda v: sum(x << (8 * i) for i, x in enumerate(v))
        return pk(counts), pk(starts)
    def spread(total, n):
        base = total // n; r = total - base * n
        return [base + (1 if i >= n - r else 0) for i in range(n)]
    cA, sA = mk([NQ, NQ, NM_] + spread(128 - 2 * NQ - NM_, 5))
    cB, sB = mk([NQ, NQ] + spread(128 - 2 * NQ, 6))
    a(f"s_mov_b32 s24, {cA & 0xffffffff}"); a(f"s_mov_b32 s25, {cA >> 32}")
    a(f"s_mov_b32 s26, {sA & 0xffffffff}"); a(f"s_mov_b32 s27, {sA >> 32}")
    a(f"s_mov_b32 s28, {cB & 0xffffffff}"); a(f"s_mov_b32 s29, {cB >> 32}")
    a(f"s_mov_b32 s30, {sB & 0xffffffff}"); a(f"s_mov_b32 s31, {sB >> 32}")
    a("s_cmp_lt_u32 s4, 28")
    a("s_cselect_b64 s[24:25], s[24:25], s[28:29]")
    a("s_cselect_b64 s[26:27], s[26:27], s[30:31]")
    a("s_lshl_b32 s9, s100, 3")
    a("s_lshr_b64 s[24:25], s[24:25], s9")
    a("s_lshr_b64 s[26:27], s[26:27], s9")
    a("s_and_b32 s99, s24, 0xff")
    a("s_and_b32 s9, s26, 0xff")
    a("s_lshl_b32 s8, s4, 22")
    a("s_lshl_b32 s9, s9, 15")
    a("s_add_u32 s8, s8, s9")
    a("s_lshl_b32 s9, s3, 12")
    a("s_add_u32 s8, s8, s9")
    a(f"s_mov_b32 s13, {f2h(CSCALE)}")
    a("v_xor_b32 v5, v3, v2")
    for i in range(4):
        a(f"v_xor_b32 v6, {4*i}, v5")
        a("v_lshlrev_b32 v6, 4, v6")
        a(f"v_lshl_add_u32 v{VK+i}, v2, 8, v6")
    for i in range(2):
        a(f"v_add_u32 v6, {4*i}, v2")
        a("v_lshlrev_b32 v6, 1, v6")
        a("v_xor_b32 v6, v6, v3")
        a("v_lshlrev_b32 v6, 4, v6")
        a(f"v_lshl_add_u32 v{VV+i}, v2, 8, v6")
    a("v_lshrrev_b32 v6, 7, v0")
    a("v_mul_u32_u24 v6, 4224, v6")
    a("v_and_b32 v7, 127, v0")
    a(f"v_lshl_add_u32 v{VI0}, v7, 2, v6")
    a("v_and_b32 v7, 3, v0")
    a(f"v_lshl_add_u32 v{VI1}, v7, 2, v6")
    a(f"v_add_u32 v{VI1}, 512, v{VI1}")
    a("v_and_b32 v7, 255, v0")
    a(f"v_lshlrev_b32 v{VI2}, 2, v7")
    a(f"v_mov_b32 v{VZ}, 0")
    a("s_mul_i32 s84, s4, 16896")
    a("s_mul_i32 s9, s5, 528")
    a("s_add_u32 s84, s84, s9")
    a(f"s_add_u32 s84, s84, {WS_PART}")
    a("s_lshl_b32 s85, s5, 5")
    a("s_add_u32 s85, s85, s4")
    a("s_lshl_b32 s85, s85, 10")
    a(f"s_add_u32 s85, s85, {WS_SP}")
    for s in range(4):
        a(f"v_xor_b32 v6, {4*s}, v5")
        a("v_lshlrev_b32 v6, 4, v6")
        a("v_lshl_add_u32 v6, v3, 8, v6")
        a(f"v_add_u32 v{RK+s}, s10, v6")
    a("v_lshrrev_b32 v6, 2, v1")
    a("v_and_b32 v7, 7, v6")
    a("v_lshlrev_b32 v6, 8, v6")
    a("v_and_b32 v32, 3, v1")
    a("v_lshl_add_u32 v6, v32, 3, v6")
    a("v_add_u32 v6, s10, v6")
    for t in range(8):
        a(f"v_xor_b32 v33, {t}, v7")
        a(f"v_lshl_add_u32 v{RV+t}, v33, 5, v6")

    def issue(slot):
        a(f"s_add_u32 m0, s10, {slot*8192}")
        for i in range(4):
            a(f"buffer_load_dwordx4 v{VK+i}, {S(RK_)}, s8 offen offset:{i*1024}{KPOL} lds")
        a(f"s_add_u32 m0, s10, {slot*8192 + 4096}")
        for i in range(4):
            a(f"buffer_load_dwordx4 v{VV+(i&1)}, {S(RV_)}, s8 offen offset:{i*1024}{VPOL} lds")
        a("s_add_u32 s8, s8, 32768")
    def misc_issue():
        a("s_lshl_b32 s9, s4, 7")
        a("s_lshl_b32 s11, s3, 4")
        a("s_add_u32 s9, s9, s11")
        a("s_lshl_b32 s9, s9, 10")
        a("s_lshl_b32 s11, s5, 7")
        a("s_add_u32 s9, s9, s11")
        a("s_lshl_b32 s11, s3, 11")
        a(f"s_add_u32 m0, s11, {L_WO}")
        a(f"buffer_load_dwordx4 v{VW}, {S(RWO)}, s9 offen{WPOL} lds")
        a("s_add_u32 s9, s9, 8192")
        a(f"s_add_u32 m0, s11, {L_WO + 1024}")
        a(f"buffer_load_dwordx4 v{VW}, {S(RWO)}, s9 offen{WPOL} lds")
        a(f"buffer_store_dword v{VZ}, v{VI0}, {S(RWS)}, s84 offen sc1")
        a(f"buffer_store_dword v{VZ}, v{VI1}, {S(RWS)}, s84 offen sc1")
        a(f"buffer_store_dword v{VZ}, v{VI2}, {S(RWS)}, s85 offen sc1")

    a("s_cmp_eq_u32 s98, 0")
    a("s_cbranch_scc1 L_pissue")
    a("s_cmp_eq_u32 s98, 1")
    a("s_cbranch_scc1 L_now2")
    a("s_waitcnt vmcnt(17)")
    a("s_branch L_xin")
    a.label("L_now2")
    a("s_waitcnt vmcnt(9)")
    a.label("L_xin")
    stamp(11)
    X, T, PK = 56, 64, 72
    for i in range(4):
        a(f"v_lshlrev_b32 v{X+2*i}, 16, v{48+i}")
        a(f"v_and_b32 v{X+1+2*i}, 0xffff0000, v{48+i}")
    layernorm8(a, X, T, PK)
    a(f"v_add_u32 v6, s94, v{VL16}")
    a(f"v_add_u32 v6, {L_XN}, v6")
    VB, VA = 53, 54
    a(f"v_and_b32 v7, 3, v1")
    a(f"v_lshlrev_b32 v{VB}, 10, v7")
    a(f"v_lshl_add_u32 v{VB}, v2, 3, v{VB}")
    a("s_lshl_b32 s9, s3, 7")
    a("s_add_u32 s9, s9, s91")
    a(f"v_add_u32 v{VB}, s9, v{VB}")
    a(f"v_lshrrev_b32 v{VA}, 2, v1")
    a(f"v_lshlrev_b32 v{VA}, 7, v{VA}")
    a(f"v_lshl_add_u32 v{VA}, v7, 3, v{VA}")
    a(f"v_add_u32 v{VA}, s10, v{VA}")
    a("v_lshlrev_b32 v55, 8, v3")
    a("v_lshl_add_u32 v55, v2, 4, v55")
    a("s_lshl_b32 s9, s3, 10")
    a(f"s_add_u32 s9, s9, {L_RED}")
    a("v_add_u32 v55, s9, v55")
    a("s_cmp_eq_u32 s98, 1")
    a("s_cbranch_scc1 L_lnq")
    layernorm8(a, X, T, PK)
    a(f"ds_write_b128 v6, v[{PK}:{PK+3}] offset:{L_Y - L_XN}")
    a("s_waitcnt vmcnt(8) lgkmcnt(0)")
    a("s_branch L_p1")
    a.label("L_lnq")
    a(f"ds_write_b128 v6, v[{PK}:{PK+3}]")
    stamp(12)
    a("s_waitcnt vmcnt(0) lgkmcnt(0)")
    a.label("L_p1")
    stamp(13)
    a("s_barrier")
    stamp(14)
    BF, AF, D = 56, 64, 96
    def gemv_reads(base):
        for ks in range(4):
            a(f"ds_read_b64 v[{BF+2*ks}:{BF+1+2*ks}], v{VB} offset:{ks*32}")
        for ks in range(4):
            for nb in range(4):
                r = AF + (ks * 4 + nb) * 2
                a(f"ds_read_b64_tr_b16 v[{r}:{r+1}], v{VA} offset:{base + ks*2048 + nb*32}")
        a("s_waitcnt lgkmcnt(0)")
    def gemv_mfma():
        for ks in range(4):
            for nb in range(4):
                r = AF + (ks * 4 + nb) * 2
                c = "0" if ks == 0 else f"v[{D+nb*4}:{D+nb*4+3}]"
                a(f"v_mfma_f32_16x16x16_bf16 v[{D+nb*4}:{D+nb*4+3}], v[{r}:{r+1}], v[{BF+2*ks}:{BF+1+2*ks}], {c}")
    gemv_reads(8192)
    gemv_mfma()
    a("v_cmp_gt_u32 vcc, 4, v3")
    a("s_and_saveexec_b64 s[86:87], vcc")
    for nb in range(4):
        a(f"ds_write_b128 v55, v[{D+nb*4}:{D+nb*4+3}] offset:{nb*64}")
    a("s_mov_b64 exec, s[86:87]")
    a("s_waitcnt lgkmcnt(0)")
    a("s_barrier")
    stamp(15)
    a("s_cmp_eq_u32 s98, 1")
    a("s_cbranch_scc0 L_mlp2")
    a("s_barrier")
    a("s_branch L_pissue")
    a.label("L_mlp2")
    a("v_lshlrev_b32 v6, 2, v1")
    a("s_lshl_b32 s9, s93, 8")
    a(f"s_add_u32 s9, s9, {L_RED}")
    a("v_add_u32 v6, s9, v6")
    for w in range(8):
        a(f"ds_read_b32 v{56+w}, v6 offset:{w*1024}")
    a("s_waitcnt lgkmcnt(0)")
    for w in range(1, 8):
        a(f"v_add_f32 v56, v56, v{56+w}")
    bf16r(a, 56, 56)
    a("v_lshlrev_b32 v52, 16, v52")
    a("v_add_f32 v56, v56, v52")
    bf16r(a, 56, 56)
    k1 = -2.0 * LOG2E * math.sqrt(2.0 / math.pi)
    a("v_mul_f32 v57, v56, v56")
    a(f"v_mul_f32 v57, {f2h(0.044715)}, v57")
    a("v_fma_f32 v57, v57, v56, v56")
    a(f"v_mul_f32 v57, {f2h(k1)}, v57")
    a("v_exp_f32 v57, v57")
    a("v_add_f32 v57, 1.0, v57")
    a("v_rcp_f32 v57, v57")
    a("v_mul_f32 v56, v56, v57")
    a("v_cvt_pk_bf16_f32 v57, v56, v56")
    a("v_lshlrev_b32 v6, 1, v1")
    a("s_lshl_b32 s9, s93, 7")
    a(f"s_add_u32 s9, s9, {L_ACT2}")
    a("v_add_u32 v6, s9, v6")
    a("ds_write_b16 v6, v57")
    a("s_waitcnt lgkmcnt(0)")
    a("s_barrier")
    a("v_and_b32 v7, 3, v1")
    a(f"v_lshlrev_b32 v{VB}, 7, v7")
    a(f"v_lshl_add_u32 v{VB}, v2, 3, v{VB}")
    a(f"v_add_u32 v{VB}, {L_ACT2}, v{VB}")
    a("s_waitcnt vmcnt(0)")
    gemv_reads(0)
    gemv_mfma()
    a("v_lshlrev_b32 v6, 11, v3")
    a("v_lshl_add_u32 v6, v2, 4, v6")
    a("s_lshl_b32 s9, s89, 13")
    a("s_lshl_b32 s11, s3, 8")
    a("s_add_u32 s9, s9, s11")
    a(f"s_add_u32 s9, s9, {WS_ZP}")
    a("v_cmp_gt_u32 vcc, 4, v3")
    a("s_and_saveexec_b64 s[86:87], vcc")
    for nb in range(4):
        a(f"buffer_store_dwordx4 v[{D+nb*4}:{D+nb*4+3}], v6, {S(RWS)}, s9 offen offset:{nb*64} sc1")
    a("s_mov_b64 exec, s[86:87]")
    a.label("L_pissue")
    Q, O, KF, VF, Sr = 32, 48, 80, 96, 112
    M, Lr, T0, T1, AL, NM, P = 116, 117, 118, 119, 120, 121, 122
    KF2, VF2 = 128, 144
    issue(0)
    issue(1)
    misc_issue()
    def frag_reads(slot, kf, vf):
        for s in range(4):
            a(f"ds_read_b128 v[{kf+4*s}:{kf+4*s+3}], v{RK+s} offset:{slot*8192}")
        for t in range(8):
            a(f"ds_read_b64_tr_b16 v[{vf+2*t}:{vf+2*t+1}], v{RV+t} offset:{slot*8192+4096}")
    a("v_and_b32 v6, 3, v1")
    a("v_lshlrev_b32 v6, 8, v6")
    a("v_lshl_add_u32 v6, v2, 4, v6")
    a(f"v_add_u32 v6, {L_Q}, v6")
    for i in range(32): a(f"v_mov_b32 v{O+i}, 0")
    a(f"v_mov_b32 v{M}, {f2h(-3.0e38)}")
    a(f"v_mov_b32 v{Lr}, 0")
    if PRE3:
        a("s_waitcnt vmcnt(13)")
        frag_reads(0, KF2, VF2)
        a("s_waitcnt lgkmcnt(0)")
        issue(0)
        a("s_waitcnt vmcnt(8)")
    else:
        a("s_waitcnt vmcnt(0)")
    stamp(1)
    a("s_barrier")
    stamp(2)
    for s in range(4):
        a(f"ds_read_b128 v[{Q+4*s}:{Q+4*s+3}], v6 offset:{s*64}")
    def qk(kf):
        for s in range(4):
            c = "0" if s == 0 else f"v[{Sr}:{Sr+3}]"
            a(f"v_mfma_f32_16x16x32_bf16 v[{Sr}:{Sr+3}], v[{kf+4*s}:{kf+4*s+3}], v[{Q+4*s}:{Q+4*s+3}], {c}")
    def soft_pv(vf):
        a(f"v_max3_f32 v{T0}, v{Sr}, v{Sr+1}, v{Sr+2}")
        a(f"v_max_f32 v{T0}, v{T0}, v{Sr+3}")
        xrow_reduce(a, T0, T1, "v_max_f32")
        a(f"v_max_f32 v{T0}, v{T0}, v{M}")
        a(f"v_sub_f32 v{AL}, v{M}, v{T0}")
        a(f"v_mul_f32 v{AL}, s13, v{AL}")
        a(f"v_exp_f32 v{AL}, v{AL}")
        a(f"v_mov_b32 v{M}, v{T0}")
        a(f"v_mul_f32 v{NM}, s13, v{T0}")
        for r in range(4):
            a(f"v_fma_f32 v{Sr+r}, v{Sr+r}, s13, -v{NM}")
        for r in range(4):
            a(f"v_exp_f32 v{Sr+r}, v{Sr+r}")
        a(f"v_add_f32 v{T0}, v{Sr}, v{Sr+1}")
        a(f"v_add_f32 v{T1}, v{Sr+2}, v{Sr+3}")
        a(f"v_add_f32 v{T0}, v{T0}, v{T1}")
        a(f"v_fma_f32 v{Lr}, v{Lr}, v{AL}, v{T0}")
        a(f"v_cvt_pk_bf16_f32 v{P}, v{Sr}, v{Sr+1}")
        a(f"v_cvt_pk_bf16_f32 v{P+1}, v{Sr+2}, v{Sr+3}")
        for i in range(32): a(f"v_mul_f32 v{O+i}, v{O+i}, v{AL}")
        for t in range(8):
            a(f"v_mfma_f32_16x16x16_bf16 v[{O+4*t}:{O+4*t+3}], v[{vf+2*t}:{vf+2*t+1}], v[{P}:{P+1}], v[{O+4*t}:{O+4*t+3}]")
    first = 1 if PRE3 else 0
    a(f"s_sub_u32 s14, s99, {2 + first}")
    a("s_mov_b32 s12, 0")
    def unit(slot):
        a("s_cmp_eq_u32 s12, 0")
        a(f"s_cbranch_scc1 L_w8_{slot}")
        a("s_waitcnt vmcnt(0)")
        a.label(f"L_w8_{slot}")
        a("s_waitcnt vmcnt(8)")
        frag_reads(slot, KF, VF)
        a("s_waitcnt lgkmcnt(8)")
        qk(KF)
        a("s_waitcnt lgkmcnt(0)")
        a("s_mov_b32 s15, s12")
        a("s_cmp_eq_u32 s14, 0")
        a("s_cselect_b32 s12, 1, 0")
        a(f"s_cbranch_scc1 L_noiss_{slot}")
        a("s_sub_u32 s14, s14, 1")
        issue(slot)
        a.label(f"L_noiss_{slot}")
        soft_pv(VF)
        a("s_cmp_lg_u32 s15, 0")
        a("s_cbranch_scc1 L_loopend")
    if PRE3:
        a("s_waitcnt lgkmcnt(0)")
        qk(KF2)
        soft_pv(VF2)
        a("s_branch L_u1")
    a.label("L_loop")
    unit(0)
    a.label("L_u1")
    unit(1)
    a("s_branch L_loop")
    a.label("L_loopend")
    stamp(3)
    xrow_reduce(a, Lr, T1, "v_add_f32")
    a("v_lshlrev_b32 v6, 9, v3")
    a("v_lshl_add_u32 v6, v2, 4, v6")
    a("v_add_u32 v6, s10, v6")
    a("v_lshlrev_b32 v7, 3, v3")
    a("v_add_u32 v7, s10, v7")
    a("v_cmp_gt_u32 vcc, 4, v3")
    a("s_and_saveexec_b64 s[86:87], vcc")
    for t in range(8):
        a(f"ds_write_b128 v6, v[{O+4*t}:{O+4*t+3}] offset:{t*64}")
    a(f"ds_write_b64 v7, v[{M}:{M+1}] offset:2048")
    a("s_mov_b64 exec, s[86:87]")
    a("v_lshrrev_b32 v6, 7, v0")
    a("v_and_b32 v7, 127, v0")
    a("v_lshlrev_b32 v8, 9, v6")
    a("v_lshl_add_u32 v8, v7, 2, v8")
    a("v_lshlrev_b32 v9, 3, v6")
    a("v_add_u32 v10, 0x10000, v8")
    a("v_add_u32 v11, 0x10000, v9")
    a("s_waitcnt lgkmcnt(0)")
    a("s_barrier")
    stamp(4)
    for w in range(8):
        a(f"ds_read_b32 v{32+w}, v{8 if w < 4 else 10} offset:{(w&3)*16384}")
        a(f"ds_read_b64 v[{40+2*w}:{41+2*w}], v{9 if w < 4 else 11} offset:{(w&3)*16384+2048}")
    a("s_waitcnt lgkmcnt(0)")
    a("v_max3_f32 v12, v40, v42, v44")
    a("v_max3_f32 v12, v12, v46, v48")
    a("v_max3_f32 v12, v12, v50, v52")
    a("v_max_f32 v12, v12, v54")
    a("v_mov_b32 v14, 0")
    a("v_mov_b32 v13, 0")
    for w in range(8):
        a(f"v_sub_f32 v15, v{40+2*w}, v12")
        a("v_mul_f32 v15, s13, v15")
        a("v_exp_f32 v15, v15")
        a(f"v_fmac_f32 v14, v15, v{32+w}")
        a(f"v_fmac_f32 v13, v15, v{41+2*w}")
    a("v_or_b32 v14, 1, v14")
    a(f"buffer_store_dword v14, v{VI0}, {S(RWS)}, s84 offen sc1")
    a("v_mul_f32 v12, s13, v12")
    a("v_or_b32 v12, 1, v12")
    a("v_or_b32 v13, 1, v13")
    a("v_cmp_eq_u32 vcc, 0, v7")
    a("s_and_saveexec_b64 s[86:87], vcc")
    a(f"buffer_store_dwordx2 v[12:13], v{VI1}, {S(RWS)}, s84 offen sc1")
    a("s_mov_b64 exec, s[86:87]")
    a("s_mov_b32 s9, 135168")
    a("v_mul_lo_u32 v10, v6, s9")
    a("v_lshl_add_u32 v11, v7, 2, v10")
    a("v_add_u32 v10, 512, v10")
    a("s_mul_i32 s9, s4, 4224")
    a(f"s_add_u32 s9, s9, {WS_PART}")
    stamp(5)
    a("s_mov_b32 s14, 0")
    a("s_mov_b32 s12, 0")
    a.label("L_s2poll")
    for sp in range(8):
        a(f"s_bitcmp1_b32 s12, {sp}")
        a(f"s_cbranch_scc1 L_s2sk{sp}")
        a(f"buffer_load_dwordx2 v[{40+2*sp}:{41+2*sp}], v10, {S(RWS)}, s9 offen offset:{sp*528} sc1")
        a(f"buffer_load_dword v{32+sp}, v11, {S(RWS)}, s9 offen offset:{sp*528} sc1")
        a.raw(f"L_s2sk{sp}:")
    a("s_waitcnt vmcnt(0)")
    for sp in range(8):
        a(f"v_and_b32 v12, v{40+2*sp}, v{41+2*sp}")
        a(f"v_and_b32 v12, v12, v{32+sp}")
        a("v_and_b32 v12, 1, v12")
        a("v_cmp_eq_u32 vcc, 1, v12")
        a("s_cmp_eq_u64 vcc, exec")
        a(f"s_cselect_b32 s11, {1 << sp}, 0")
        a("s_or_b32 s12, s12, s11")
    a("s_cmp_eq_u32 s12, 0xff")
    a("s_cbranch_scc1 L_s2go")
    a("s_sleep 1")
    a("s_add_u32 s14, s14, 1")
    a(f"s_cmp_lt_u32 s14, {SPIN_MAX}")
    a("s_cbranch_scc1 L_s2poll")
    a.label("L_s2go")
    stamp(6)
    a("v_max3_f32 v12, v40, v42, v44")
    a("v_max3_f32 v12, v12, v46, v48")
    a("v_max3_f32 v12, v12, v50, v52")
    a("v_max_f32 v12, v12, v54")
    a("v_mov_b32 v13, 0")
    a("v_mov_b32 v14, 0")
    for sp in range(8):
        a(f"v_sub_f32 v15, v{40+2*sp}, v12")
        a("v_exp_f32 v15, v15")
        a(f"v_fmac_f32 v13, v15, v{32+sp}")
        a(f"v_fmac_f32 v14, v15, v{41+2*sp}")
    a("v_rcp_f32 v14, v14")
    a("v_mul_f32 v13, v13, v14")
    a("v_cvt_pk_bf16_f32 v13, v13, v13")
    a("v_lshlrev_b32 v15, 1, v0")
    a(f"v_add_u32 v15, {L_OACT}, v15")
    a("ds_write_b16 v15, v13")
    a("v_and_b32 v14, 3, v1")
    a("v_lshlrev_b32 v16, 8, v14")
    a("v_lshl_add_u32 v16, v2, 3, v16")
    a("s_lshl_b32 s9, s3, 5")
    a(f"s_add_u32 s9, s9, {L_OACT}")
    a("v_add_u32 v16, s9, v16")
    a("v_lshrrev_b32 v17, 2, v1")
    a("v_lshlrev_b32 v17, 7, v17")
    a("v_lshl_add_u32 v17, v14, 3, v17")
    a("s_lshl_b32 s9, s3, 11")
    a(f"s_add_u32 s9, s9, {L_WO}")
    a("v_add_u32 v17, s9, v17")
    for nb in range(4):
        a(f"ds_read_b64_tr_b16 v[{22+2*nb}:{23+2*nb}], v17 offset:{nb*32}")
    a("v_lshlrev_b32 v18, 8, v3")
    a("v_lshl_add_u32 v18, v2, 4, v18")
    a("s_lshl_b32 s9, s3, 10")
    a(f"s_add_u32 s9, s9, {L_RED}")
    a("v_add_u32 v18, s9, v18")
    a("s_waitcnt lgkmcnt(0)")
    a("s_barrier")
    a("ds_read_b64 v[20:21], v16")
    a("s_waitcnt lgkmcnt(0)")
    D2 = 32
    for nb in range(4):
        a(f"v_mfma_f32_16x16x16_bf16 v[{D2+4*nb}:{D2+4*nb+3}], v[{22+2*nb}:{23+2*nb}], v[20:21], 0")
    a("v_cmp_gt_u32 vcc, 4, v3")
    a("s_and_saveexec_b64 s[86:87], vcc")
    for nb in range(4):
        a(f"ds_write_b128 v18, v[{D2+4*nb}:{D2+4*nb+3}] offset:{nb*64}")
    a("s_mov_b64 exec, s[86:87]")
    a(f"v_add_u32 v20, {L_RED}, v{VI2}")
    a("s_waitcnt lgkmcnt(0)")
    a("s_barrier")
    a("s_cmp_ge_u32 s3, 4")
    a("s_cbranch_scc1 L_s3")
    for w in range(8):
        a(f"ds_read_b32 v{56+w}, v20 offset:{w*1024}")
    a("s_waitcnt lgkmcnt(0)")
    for w in range(1, 8):
        a(f"v_add_f32 v56, v56, v{56+w}")
    a("v_or_b32 v56, 1, v56")
    a(f"buffer_store_dword v56, v{VI2}, {S(RWS)}, s85 offen sc1")
    a.label("L_s3")
    stamp(7)
    a("s_cmp_lt_u32 s2, 224")
    a("s_cbranch_scc1 L_end")
    a("s_and_b32 s6, s4, 3")
    a("v_lshlrev_b32 v5, 2, v1")
    a("v_lshlrev_b32 v6, 1, v1")
    a("s_lshl_b32 s9, s3, 13")
    a("s_lshl_b32 s11, s6, 11")
    a("s_add_u32 s9, s9, s11")
    a("s_lshl_b32 s11, s5, 8")
    a("s_add_u32 s9, s9, s11")
    a(f"s_add_u32 s9, s9, {WS_ZP}")
    for i in range(4):
        a(f"buffer_load_dword v{40+i}, v5, {S(RWS)}, s9 offen sc1")
        if i < 3: a("s_add_u32 s9, s9, 65536")
    srd(a, RB, P_B2, 1024)
    a("s_lshl_b32 s11, s5, 7")
    a(f"buffer_load_ushort v44, v6, {S(RB)}, s11 offen")
    a("s_lshl_b32 s12, s6, 10")
    a("s_add_u32 s12, s12, s11")
    a(f"buffer_load_ushort v45, v6, {S(RX)}, s12 offen")
    a("s_lshl_b32 s9, s5, 15")
    a("s_lshl_b32 s11, s3, 12")
    a("s_add_u32 s9, s9, s11")
    a("s_lshl_b32 s11, s6, 8")
    a("s_add_u32 s9, s9, s11")
    a(f"s_add_u32 s9, s9, {WS_SP}")
    a("s_mov_b32 s14, 0")
    a.label("L_s3poll")
    for i in range(4):
        a(f"buffer_load_dword v{32+i}, v5, {S(RWS)}, s9 offen offset:{i*1024} sc1")
    a("s_waitcnt vmcnt(0)")
    a("v_and_b32 v12, v32, v33")
    a("v_and_b32 v12, v12, v34")
    a("v_and_b32 v12, v12, v35")
    a("v_and_b32 v12, 1, v12")
    a("v_cmp_eq_u32 vcc, 1, v12")
    a("s_cmp_eq_u64 vcc, exec")
    a("s_cbranch_scc1 L_s3go")
    a("s_sleep 1")
    a("s_add_u32 s14, s14, 1")
    a(f"s_cmp_lt_u32 s14, {SPIN_MAX}")
    a("s_cbranch_scc1 L_s3poll")
    a.label("L_s3go")
    stamp(8)
    a("v_add_f32 v32, v32, v33")
    a("v_add_f32 v34, v34, v35")
    a("v_add_f32 v32, v32, v34")
    a("v_add_f32 v33, v40, v41")
    a("v_add_f32 v33, v33, v42")
    a("s_cmp_lt_u32 s3, 4")
    a("s_cbranch_scc0 L_s3noz")
    a("v_add_f32 v33, v33, v43")
    a.label("L_s3noz")
    a("v_lshlrev_b32 v7, 3, v1")
    a("s_lshl_b32 s9, s3, 9")
    a(f"s_add_u32 s9, s9, {L_S3}")
    a("v_add_u32 v8, s9, v7")
    a("ds_write_b64 v8, v[32:33]")
    a("s_waitcnt lgkmcnt(0)")
    a("s_barrier")
    a("s_cmp_lg_u32 s3, 0")
    a("s_cbranch_scc1 L_end")
    a(f"v_add_u32 v8, {L_S3}, v7")
    for w in range(8):
        a(f"ds_read_b64 v[{16+2*w}:{17+2*w}], v8 offset:{w*512}")
    a("s_waitcnt lgkmcnt(0)")
    for w in range(1, 8):
        a(f"v_add_f32 v16, v16, v{16+2*w}")
        a(f"v_add_f32 v17, v17, v{17+2*w}")
    bf16r(a, 16, 16)
    bf16r(a, 17, 17)
    a("v_lshlrev_b32 v44, 16, v44")
    a("v_lshlrev_b32 v45, 16, v45")
    a("v_add_f32 v17, v17, v44")
    bf16r(a, 17, 17)
    a(f"v_mul_f32 v10, {f2h(-LOG2E)}, v17")
    a("v_exp_f32 v10, v10")
    a("v_add_f32 v10, 1.0, v10")
    a("v_rcp_f32 v10, v10")
    a("v_mul_f32 v17, v17, v10")
    bf16r(a, 17, 17)
    a("v_mul_f32 v16, v16, v17")
    bf16r(a, 16, 16)
    a("v_add_f32 v16, v16, v45")
    a("v_cvt_pk_bf16_f32 v16, v16, v16")
    a(f"buffer_store_short v16, v6, {S(ROUT)}, s12 offen")
    a("s_cmp_lg_u32 s2, 255")
    a("s_cbranch_scc1 L_end")
    a("v_mov_b32 v17, 1")
    a("v_mov_b32 v18, 0")
    a(f"s_mov_b32 s9, {WS_EPOCH}")
    a("s_mov_b64 exec, 1")
    a(f"buffer_atomic_add v17, v18, {S(RWS)}, s9 offen")
    a("s_mov_b64 exec, -1")
    a("s_branch L_end")

    a.label("L_helper")
    a("v_mov_b32 v40, 1")
    a("v_mov_b32 v41, 0")
    a(f"s_mov_b32 s9, {WS_EPOCH}")
    a(f"buffer_load_dword v39, v41, {S(RWS)}, s9 offen sc1")
    a("v_lshlrev_b32 v38, 5, v1")
    a("s_lshl_b32 s15, s6, 14")
    a("s_lshl_b32 s11, s7, 11")
    a("s_add_u32 s15, s15, s11")
    a(f"s_add_u32 s15, s15, {WS_QG}")
    a(f"v_add_u32 v37, {L_Q}, v{VL16}")
    a("s_cmp_eq_u32 s98, 0")
    a("s_cbranch_scc1 L_h_poll")
    a("v_lshlrev_b32 v6, 3, v1")
    a(f"v_add_u32 v6, {L_RED}, v6")
    a("v_and_b32 v7, 31, v1")
    a("v_lshlrev_b32 v7, 3, v7")
    a("v_lshrrev_b32 v36, 5, v1")
    a("v_lshl_add_u32 v7, v36, 14, v7")
    a("s_lshl_b32 s9, s89, 8")
    a(f"s_add_u32 s9, s9, {WS_QG}")
    a("s_barrier")
    a("s_barrier")
    a("s_cmp_eq_u32 s98, 1")
    a("s_cbranch_scc1 L_h_q")
    a("s_barrier")
    a("s_branch L_h_poll")
    a.label("L_h_q")
    stamp(6)
    for bb in range(2):
        for w in range(8):
            a(f"ds_read_b64 v[{48+bb*16+2*w}:{49+bb*16+2*w}], v6 offset:{w*1024 + bb*512}")
    a("s_waitcnt vmcnt(0) lgkmcnt(0)")
    a("v_add_u32 v35, 1, v39")
    for bb in range(2):
        r = 48 + bb * 16
        for w in range(1, 8):
            a(f"v_add_f32 v{r}, v{r}, v{r+2*w}")
            a(f"v_add_f32 v{r+1}, v{r+1}, v{r+2*w+1}")
        a(f"v_cvt_pk_bf16_f32 v{r}, v{r}, v{r+1}")
        a(f"v_mov_b32 v{r+1}, v35")
        a(f"buffer_store_dwordx2 v[{r}:{r+1}], v7, {S(RWS)}, s9 offen sc1")
        if bb == 0: a("s_add_u32 s9, s9, 32768")
    stamp(7)
    a("s_barrier")
    a.label("L_h_poll")
    stamp(1)
    a("s_mov_b32 s14, 0")
    a.label("L_h_poll1")
    a(f"buffer_load_dwordx4 v[44:47], v38, {S(RWS)}, s15 offen sc1")
    a(f"buffer_load_dwordx4 v[48:51], v38, {S(RWS)}, s15 offen offset:16 sc1")
    a("s_waitcnt vmcnt(0)")
    a("v_add_u32 v35, 1, v39")
    a("v_xor_b32 v42, v45, v35")
    a("v_xor_b32 v43, v47, v35")
    a("v_or_b32 v42, v42, v43")
    a("v_xor_b32 v43, v49, v35")
    a("v_or_b32 v42, v42, v43")
    a("v_xor_b32 v43, v51, v35")
    a("v_or_b32 v42, v42, v43")
    a("v_cmp_eq_u32 vcc, 0, v42")
    a("s_cmp_eq_u64 vcc, exec")
    a("s_cbranch_scc1 L_h_got")
    a(f"s_sleep {PSLEEP}")
    a("s_add_u32 s14, s14, 1")
    a(f"s_cmp_lt_u32 s14, {SPIN_MAX}")
    a("s_cbranch_scc1 L_h_poll1")
    a.label("L_h_got")
    stamp(2)
    a("v_mov_b32 v45, v46")
    a("v_mov_b32 v46, v48")
    a("v_mov_b32 v47, v50")
    a("ds_write_b128 v37, v[44:47]")
    a("s_waitcnt lgkmcnt(0)")
    stamp(3)
    a("s_barrier")
    stamp(4)
    a("s_mov_b64 exec, 1")
    a(f"buffer_atomic_add v40, v41, {S(RDBG)}, 0 offen offset:128")
    a("s_mov_b64 exec, -1")
    a("s_mov_b32 s14, 0")
    a.label("L_h_poll2")
    a("s_sleep 64")
    a(f"buffer_load_dword v42, v41, {S(RDBG)}, 0 offen offset:128 sc1")
    a("s_waitcnt vmcnt(0)")
    a("v_readfirstlane_b32 s11, v42")
    a("s_cmp_ge_u32 s11, 256")
    a("s_cbranch_scc1 L_h_done")
    a("s_add_u32 s14, s14, 1")
    a(f"s_cmp_lt_u32 s14, {SPIN_MAX}")
    a("s_cbranch_scc1 L_h_poll2")
    a.label("L_h_done")
    stamp(5)
    a("s_barrier")
    a.label("L_end")
    if STAMP:
        stamp(9)
        a("s_lshl_b32 s9, s2, 10")
        a("s_lshl_b32 s11, s3, 6")
        a("s_add_u32 s9, s9, s11")
        a(f"s_add_u32 s9, s9, {WS_TS}")
        a("v_lshlrev_b32 v6, 2, v1")
        a("v_cmp_gt_u32 vcc, 16, v1")
        a("s_and_saveexec_b64 s[86:87], vcc")
        a(f"buffer_store_dword v{VST}, v6, {S(RWS)}, s9 offen")
    a.label("L_exit")
    a("s_endpgm")
    hdr = f"""; @launch grid=(256,1,1) block=(576,1,1) lds=163840
.amdgcn_target "amdgcn-amd-amdhsa--gfx950"
.text
"""
    return hdr + kernel_begin(KN) + a.text() + '.section .rodata,"a"\n.p2align 6\n' + kd(KN, NV)

if __name__ == "__main__":
    import json
    out = sys.argv[1]
    opts = json.loads(sys.argv[2]) if len(sys.argv) > 2 else {}
    open(out, "w").write(gen(opts))
```

```python
import struct, math, sys
from asmdsl import Asm
from gen_v1 import *

KN = NAME + "_kernel"
L_WO, L_XN, L_Y, L_RED = 131072, 147456, 151552, 155648
L_Q = L_XN
L_ACT2 = L_XN + 2048
L_OACT = L_XN + 3072
L_S3 = L_Y
L_SYNC = L_XN + 1536
SPIN_MAX = 1 << 20
WS_TS = 4 << 20
WS_EPOCH = 3 << 20
WS_QG = 2 << 20
PSLOT = 1152
WS_PART2 = 5 << 20
WS_SP2 = 7 << 20
WS_ZP2 = 8 << 20

def gen(opts=None):
    opts = opts or {}
    STAMP = opts.get("stamp", 0)
    PSLEEP = opts.get("psleep", 2)
    E = opts.get("E", 2)
    NV = 128 + 32 * E + 16
    VST = NV - 1
    VP = 128 + 32 * E
    POL = {"nt": " nt", "def": "", "sc1": " sc1", "sc0sc1": " sc0 sc1"}
    KPOL = POL[opts.get("kpol", "nt")]; VPOL = POL[opts.get("vpol", "nt")]; WPOL = POL[opts.get("wpol", "nt")]
    a = Asm()
    RK_, RV_, RWS, RW, RX, RW2, RWO, RDBG, RB, ROUT = 44, 48, 52, 56, 60, 64, 68, 72, 76, 80
    def S(r): return f"s[{r}:{r+3}]"
    def stamp(idx):
        if not STAMP: return
        a("s_memrealtime s[96:97]")
        a("s_waitcnt lgkmcnt(0)")
        a(f"v_writelane_b32 v{VST}, s96, {idx}")
    a("s_cmp_ge_u32 s2, 256")
    a("s_cbranch_scc1 L_exit")
    if STAMP: a(f"v_mov_b32 v{VST}, 0")
    stamp(0)
    load_ptrs(a)
    lane_decode(a)
    a("s_lshr_b32 s4, s2, 3")
    a("s_and_b32 s5, s2, 7")
    a("s_lshr_b32 s6, s4, 3")
    a("s_and_b32 s7, s4, 7")
    a("s_lshl_b32 s10, s3, 14")
    VK, VV, RK, RV, VW, VL16 = 8, 12, 14, 18, 26, 27
    VI0, VI1, VI2, VZ = 28, 29, 30, 31
    a(f"v_lshlrev_b32 v{VL16}, 4, v1")
    a("v_lshrrev_b32 v6, 3, v1")
    a("v_and_b32 v7, 7, v1")
    a("v_lshlrev_b32 v7, 4, v7")
    a(f"v_lshl_add_u32 v{VW}, v6, 10, v7")
    a(f"v_mov_b32 v{VZ}, 0")
    a("s_sub_u32 s100, s5, s4")
    a("s_and_b32 s100, s100, 7")
    a("s_cmp_lt_u32 s4, 28")
    a("s_cselect_b32 s98, 2, 0")
    a("s_cmp_eq_u32 s100, 2")
    a("s_cselect_b32 s98, s98, 0")
    a("s_cmp_lt_u32 s100, 2")
    a("s_cselect_b32 s98, 1, s98")
    if opts.get("norole"): a("s_mov_b32 s98, 0")
    a("s_cmp_eq_u32 s98, 2")
    a("s_cselect_b32 s42, 1, 0")
    a("s_cselect_b32 s98, 0, s98")
    a("s_lshl_b32 s89, s4, 1")
    a("s_add_u32 s89, s89, s100")
    a("s_mov_b32 s90, 3584")
    a(f"s_mov_b32 s91, {L_Y}")
    a(f"s_mov_b32 s{RW+2}, {512*1792*2}")
    a("s_cmp_eq_u32 s98, 1")
    a("s_cselect_b32 s89, s89, s4")
    a("s_cselect_b32 s90, 8192, s90")
    a(f"s_cselect_b32 s91, {L_XN}, s91")
    a(f"s_cselect_b32 s{RW+2}, {512*4096*2}, s{RW+2}")
    a(f"s_mov_b32 s{RW+3}, 0x20000")
    a("s_lshl_b32 s92, s89, 7")
    a("v_mul_lo_u32 v6, v6, s90")
    a("v_add_u32 v6, v6, v7")
    a("s_and_b32 s93, s3, 3")
    a("s_lshl_b32 s94, s93, 10")
    a("s_lshl_b32 s9, s3, 6")
    a("s_mul_i32 s9, s9, s90")
    a("s_add_u32 s9, s9, s92")
    a("s_lshl_b32 s11, s90, 3")
    a("v_lshlrev_b32 v7, 1, v1")
    a(f"s_mov_b32 s12, {WS_EPOCH}")
    a("s_waitcnt lgkmcnt(0)")
    a("s_cmp_eq_u32 s98, 1")
    a(f"s_cselect_b32 s{RW}, s{P_WQ}, s{P_W1}")
    a(f"s_cselect_b32 s{RW+1}, s{P_WQ+1}, s{P_W1+1}")
    srd(a, RX, P_X, 4096)
    srd(a, RWS, P_WS, WS_SIZE)
    srd(a, RB, P_B1, 1792 * 2)
    srd(a, RW2, P_W2, 1792 * 512 * 2)
    VEP = VP + 10
    a(f"buffer_load_dword v{VEP}, v{VZ}, {S(RWS)}, s12 offen sc1")
    a("s_cmp_eq_u32 s98, 0")
    a("s_cbranch_scc1 L_setup")
    a(f"buffer_load_dwordx4 v[48:51], v{VL16}, {S(RX)}, s94 offen")
    a(f"buffer_load_ushort v52, v7, {S(RB)}, s92 offen")
    for i in range(8):
        a(f"s_add_u32 m0, s10, {8192 + i*1024}")
        a(f"buffer_load_dwordx4 v6, {S(RW)}, s9 offen{WPOL} lds")
        if i < 7: a("s_add_u32 s9, s9, s11")
    a("s_cmp_eq_u32 s98, 1")
    a("s_cbranch_scc1 L_setup")
    a("s_lshl_b32 s9, s89, 16")
    a("s_lshl_b32 s11, s3, 7")
    a("s_add_u32 s9, s9, s11")
    for i in range(8):
        a(f"s_add_u32 m0, s10, {i*1024}")
        a(f"buffer_load_dwordx4 v{VW}, {S(RW2)}, s9 offen{WPOL} lds")
        if i < 7: a("s_add_u32 s9, s9, 8192")
    a.label("L_setup")
    stamp(10)
    srd(a, RK_, P_K, 128 << 20)
    srd(a, RV_, P_V, 128 << 20)
    srd(a, RWO, P_WO, 4096 * 512 * 2)
    srd(a, RDBG, P_DBG, 256)
    srd(a, ROUT, P_OUT, 4096)
    NQ, NM_ = opts.get("nq", 16), opts.get("nm", 16)
    def mk(counts):
        starts = [sum(counts[:i]) for i in range(8)]
        pk = lambda v: sum(x << (8 * i) for i, x in enumerate(v))
        return pk(counts), pk(starts)
    def spread(total, n):
        base = total // n; r = total - base * n
        return [base + (1 if i >= n - r else 0) for i in range(n)]
    cA, sA = mk([NQ, NQ, NM_] + spread(128 - 2 * NQ - NM_, 5))
    cB, sB = mk([NQ, NQ] + spread(128 - 2 * NQ, 6))
    a(f"s_mov_b32 s24, {cA & 0xffffffff}"); a(f"s_mov_b32 s25, {cA >> 32}")
    a(f"s_mov_b32 s26, {sA & 0xffffffff}"); a(f"s_mov_b32 s27, {sA >> 32}")
    a(f"s_mov_b32 s28, {cB & 0xffffffff}"); a(f"s_mov_b32 s29, {cB >> 32}")
    a(f"s_mov_b32 s30, {sB & 0xffffffff}"); a(f"s_mov_b32 s31, {sB >> 32}")
    a("s_cmp_lt_u32 s4, 28")
    a("s_cselect_b64 s[24:25], s[24:25], s[28:29]")
    a("s_cselect_b64 s[26:27], s[26:27], s[30:31]")
    a("s_lshl_b32 s9, s100, 3")
    a("s_lshr_b64 s[24:25], s[24:25], s9")
    a("s_lshr_b64 s[26:27], s[26:27], s9")
    a("s_and_b32 s99, s24, 0xff")
    a("s_and_b32 s9, s26, 0xff")
    a("s_lshl_b32 s8, s4, 22")
    a("s_lshl_b32 s9, s9, 15")
    a("s_add_u32 s8, s8, s9")
    a("s_lshl_b32 s9, s3, 12")
    a("s_add_u32 s8, s8, s9")
    a(f"s_mov_b32 s13, {f2h(CSCALE)}")
    a("v_xor_b32 v5, v3, v2")
    for i in range(4):
        a(f"v_xor_b32 v6, {4*i}, v5")
        a("v_lshlrev_b32 v6, 4, v6")
        a(f"v_lshl_add_u32 v{VK+i}, v2, 8, v6")
    for i in range(2):
        a(f"v_add_u32 v6, {4*i}, v2")
        a("v_lshlrev_b32 v6, 1, v6")
        a("v_xor_b32 v6, v6, v3")
        a("v_lshlrev_b32 v6, 4, v6")
        a(f"v_lshl_add_u32 v{VV+i}, v2, 8, v6")
    a("v_lshrrev_b32 v6, 7, v0")
    a(f"v_mul_u32_u24 v6, {8*PSLOT}, v6")
    a("v_and_b32 v7, 127, v0")
    a(f"v_lshl_add_u32 v{VI0}, v7, 3, v6")
    a(f"v_add_u32 v{VI1}, 1024, v6")
    a("v_and_b32 v7, 255, v0")
    a(f"v_lshlrev_b32 v{VI2}, 2, v7")
    a(f"s_mul_i32 s84, s4, {32*PSLOT}")
    a(f"s_mul_i32 s9, s5, {PSLOT}")
    a("s_add_u32 s84, s84, s9")
    a(f"s_add_u32 s84, s84, {WS_PART2}")
    a("s_lshl_b32 s85, s5, 5")
    a("s_add_u32 s85, s85, s4")
    a("s_lshl_b32 s85, s85, 11")
    a(f"s_add_u32 s85, s85, {WS_SP2}")
    for s in range(4):
        a(f"v_xor_b32 v6, {4*s}, v5")
        a("v_lshlrev_b32 v6, 4, v6")
        a("v_lshl_add_u32 v6, v3, 8, v6")
        a(f"v_add_u32 v{RK+s}, s10, v6")
    a("v_lshrrev_b32 v6, 2, v1")
    a("v_and_b32 v7, 7, v6")
    a("v_lshlrev_b32 v6, 8, v6")
    a("v_and_b32 v32, 3, v1")
    a("v_lshl_add_u32 v6, v32, 3, v6")
    a("v_add_u32 v6, s10, v6")
    for t in range(8):
        a(f"v_xor_b32 v33, {t}, v7")
        a(f"v_lshl_add_u32 v{RV+t}, v33, 5, v6")
    VQA = VP + 11
    a(f"v_lshlrev_b32 v{VQA}, 5, v1")
    a("s_lshl_b32 s88, s6, 14")
    a("s_lshl_b32 s11, s7, 11")
    a("s_add_u32 s88, s88, s11")
    a(f"s_add_u32 s88, s88, {WS_QG}")

    def issue(slot):
        a(f"s_add_u32 m0, s10, {slot*8192}")
        for i in range(4):
            a(f"buffer_load_dwordx4 v{VK+i}, {S(RK_)}, s8 offen offset:{i*1024}{KPOL} lds")
        a(f"s_add_u32 m0, s10, {slot*8192 + 4096}")
        for i in range(4):
            a(f"buffer_load_dwordx4 v{VV+(i&1)}, {S(RV_)}, s8 offen offset:{i*1024}{VPOL} lds")
        a("s_add_u32 s8, s8, 32768")
    def misc_issue():
        a("s_lshl_b32 s9, s4, 7")
        a("s_lshl_b32 s11, s3, 4")
        a("s_add_u32 s9, s9, s11")
        a("s_lshl_b32 s9, s9, 10")
        a("s_lshl_b32 s11, s5, 7")
        a("s_add_u32 s9, s9, s11")
        a("s_lshl_b32 s11, s3, 11")
        a(f"s_add_u32 m0, s11, {L_WO}")
        a(f"buffer_load_dwordx4 v{VW}, {S(RWO)}, s9 offen{WPOL} lds")
        a("s_add_u32 s9, s9, 8192")
        a(f"s_add_u32 m0, s11, {L_WO + 1024}")
        a(f"buffer_load_dwordx4 v{VW}, {S(RWO)}, s9 offen{WPOL} lds")

    a("s_cmp_eq_u32 s98, 0")
    a("s_cbranch_scc1 L_pissue")
    a("s_cmp_eq_u32 s98, 1")
    a("s_cbranch_scc1 L_now2")
    a("s_waitcnt vmcnt(17)")
    a("s_branch L_xin")
    a.label("L_now2")
    a("s_waitcnt vmcnt(9)")
    a.label("L_xin")
    stamp(11)
    X, T, PK = 56, 64, 72
    for i in range(4):
        a(f"v_lshlrev_b32 v{X+2*i}, 16, v{48+i}")
        a(f"v_and_b32 v{X+1+2*i}, 0xffff0000, v{48+i}")
    layernorm8(a, X, T, PK)
    a(f"v_add_u32 v6, s94, v{VL16}")
    a(f"v_add_u32 v6, {L_XN}, v6")
    VB, VA = 53, 54
    a(f"v_and_b32 v7, 3, v1")
    a(f"v_lshlrev_b32 v{VB}, 10, v7")
    a(f"v_lshl_add_u32 v{VB}, v2, 3, v{VB}")
    a("s_lshl_b32 s9, s3, 7")
    a("s_add_u32 s9, s9, s91")
    a(f"v_add_u32 v{VB}, s9, v{VB}")
    a(f"v_lshrrev_b32 v{VA}, 2, v1")
    a(f"v_lshlrev_b32 v{VA}, 7, v{VA}")
    a(f"v_lshl_add_u32 v{VA}, v7, 3, v{VA}")
    a(f"v_add_u32 v{VA}, s10, v{VA}")
    a("v_lshlrev_b32 v55, 8, v3")
    a("v_lshl_add_u32 v55, v2, 4, v55")
    a("s_lshl_b32 s9, s3, 10")
    a(f"s_add_u32 s9, s9, {L_RED}")
    a("v_add_u32 v55, s9, v55")
    a("s_cmp_eq_u32 s98, 1")
    a("s_cbranch_scc1 L_lnq")
    layernorm8(a, X, T, PK)
    a(f"ds_write_b128 v6, v[{PK}:{PK+3}] offset:{L_Y - L_XN}")
    a("s_waitcnt vmcnt(8) lgkmcnt(0)")
    a("s_branch L_p1")
    a.label("L_lnq")
    a(f"ds_write_b128 v6, v[{PK}:{PK+3}]")
    stamp(12)
    a("s_waitcnt vmcnt(0) lgkmcnt(0)")
    a.label("L_p1")
    stamp(13)
    a("s_barrier")
    stamp(14)
    BF, AF, D = 56, 64, 96
    def gemv_reads(base):
        for ks in range(4):
            a(f"ds_read_b64 v[{BF+2*ks}:{BF+1+2*ks}], v{VB} offset:{ks*32}")
        for ks in range(4):
            for nb in range(4):
                r = AF + (ks * 4 + nb) * 2
                a(f"ds_read_b64_tr_b16 v[{r}:{r+1}], v{VA} offset:{base + ks*2048 + nb*32}")
        a("s_waitcnt lgkmcnt(0)")
    def gemv_mfma():
        for ks in range(4):
            for nb in range(4):
                r = AF + (ks * 4 + nb) * 2
                c = "0" if ks == 0 else f"v[{D+nb*4}:{D+nb*4+3}]"
                a(f"v_mfma_f32_16x16x16_bf16 v[{D+nb*4}:{D+nb*4+3}], v[{r}:{r+1}], v[{BF+2*ks}:{BF+1+2*ks}], {c}")
    gemv_reads(8192)
    gemv_mfma()
    a("v_cmp_gt_u32 vcc, 4, v3")
    a("s_and_saveexec_b64 s[86:87], vcc")
    for nb in range(4):
        a(f"ds_write_b128 v55, v[{D+nb*4}:{D+nb*4+3}] offset:{nb*64}")
    a("s_mov_b64 exec, s[86:87]")
    a("s_waitcnt lgkmcnt(0)")
    a("s_barrier")
    stamp(15)
    a("s_cmp_eq_u32 s98, 1")
    a("s_cbranch_scc0 L_mlp2")
    a("s_cmp_ge_u32 s3, 2")
    a("s_cbranch_scc1 L_q_bar")
    a("v_lshlrev_b32 v6, 3, v1")
    a("s_lshl_b32 s9, s3, 9")
    a(f"s_add_u32 s9, s9, {L_RED}")
    a("v_add_u32 v6, s9, v6")
    for w in range(8):
        a(f"ds_read_b64 v[{56+2*w}:{57+2*w}], v6 offset:{w*1024}")
    a("v_and_b32 v7, 31, v1")
    a("v_lshlrev_b32 v7, 3, v7")
    a("v_lshrrev_b32 v53, 5, v1")
    a("v_lshl_add_u32 v7, v53, 14, v7")
    a("s_lshl_b32 s9, s89, 8")
    a("s_lshl_b32 s11, s3, 15")
    a("s_add_u32 s9, s9, s11")
    a(f"s_add_u32 s9, s9, {WS_QG}")
    a("s_waitcnt lgkmcnt(0)")
    for w in range(1, 8):
        a(f"v_add_f32 v56, v56, v{56+2*w}")
        a(f"v_add_f32 v57, v57, v{57+2*w}")
    a("v_cvt_pk_bf16_f32 v56, v56, v57")
    a(f"v_add_u32 v57, 1, v{VEP}")
    a(f"buffer_store_dwordx2 v[56:57], v7, {S(RWS)}, s9 offen sc1")
    a.label("L_q_bar")
    a("s_barrier")
    a("s_branch L_pissue")
    a.label("L_mlp2")
    a("v_lshlrev_b32 v6, 2, v1")
    a("s_lshl_b32 s9, s93, 8")
    a(f"s_add_u32 s9, s9, {L_RED}")
    a("v_add_u32 v6, s9, v6")
    for w in range(8):
        a(f"ds_read_b32 v{56+w}, v6 offset:{w*1024}")
    a("s_waitcnt lgkmcnt(0)")
    for w in range(1, 8):
        a(f"v_add_f32 v56, v56, v{56+w}")
    bf16r(a, 56, 56)
    a("v_lshlrev_b32 v52, 16, v52")
    a("v_add_f32 v56, v56, v52")
    bf16r(a, 56, 56)
    k1 = -2.0 * LOG2E * math.sqrt(2.0 / math.pi)
    a("v_mul_f32 v57, v56, v56")
    a(f"v_mul_f32 v57, {f2h(0.044715)}, v57")
    a("v_fma_f32 v57, v57, v56, v56")
    a(f"v_mul_f32 v57, {f2h(k1)}, v57")
    a("v_exp_f32 v57, v57")
    a("v_add_f32 v57, 1.0, v57")
    a("v_rcp_f32 v57, v57")
    a("v_mul_f32 v56, v56, v57")
    a("v_cvt_pk_bf16_f32 v57, v56, v56")
    a("v_lshlrev_b32 v6, 1, v1")
    a("s_lshl_b32 s9, s93, 7")
    a(f"s_add_u32 s9, s9, {L_ACT2}")
    a("v_add_u32 v6, s9, v6")
    a("ds_write_b16 v6, v57")
    a("s_waitcnt lgkmcnt(0)")
    a("s_barrier")
    a("v_and_b32 v7, 3, v1")
    a(f"v_lshlrev_b32 v{VB}, 7, v7")
    a(f"v_lshl_add_u32 v{VB}, v2, 3, v{VB}")
    a(f"v_add_u32 v{VB}, {L_ACT2}, v{VB}")
    a("s_waitcnt vmcnt(0)")
    gemv_reads(0)
    gemv_mfma()
    a("v_lshlrev_b32 v6, 12, v3")
    a("v_lshl_add_u32 v6, v2, 5, v6")
    a("s_lshl_b32 s9, s89, 14")
    a("s_lshl_b32 s11, s3, 9")
    a("s_add_u32 s9, s9, s11")
    a(f"s_add_u32 s9, s9, {WS_ZP2}")
    a(f"v_add_u32 v7, 1, v{VEP}")
    for nb in range(4):
        for hh in range(2):
            r = 56 + (nb * 2 + hh) * 4
            a(f"v_mov_b32 v{r}, v{D+nb*4+2*hh}")
            a(f"v_mov_b32 v{r+1}, v7")
            a(f"v_mov_b32 v{r+2}, v{D+nb*4+2*hh+1}")
            a(f"v_mov_b32 v{r+3}, v7")
    a("v_cmp_gt_u32 vcc, 4, v3")
    a("s_and_saveexec_b64 s[86:87], vcc")
    for nb in range(4):
        for hh in range(2):
            r = 56 + (nb * 2 + hh) * 4
            a(f"buffer_store_dwordx4 v[{r}:{r+3}], v6, {S(RWS)}, s9 offen offset:{nb*128 + hh*16} sc1")
    a("s_mov_b64 exec, s[86:87]")
    a.label("L_pissue")
    Q, O, KF, VF, Sr = 32, 48, 80, 96, 112
    M, Lr, T0, T1, AL, NM, P = 116, 117, 118, 119, 120, 121, 122
    def XK(e): return 128 + 32 * e
    def XV(e): return 128 + 32 * e + 16
    def frag_reads(slot, kf, vf):
        for s in range(4):
            a(f"ds_read_b128 v[{kf+4*s}:{kf+4*s+3}], v{RK+s} offset:{slot*8192}")
        for t in range(8):
            a(f"ds_read_b64_tr_b16 v[{vf+2*t}:{vf+2*t+1}], v{RV+t} offset:{slot*8192+4096}")
    def poll_issue():
        a(f"buffer_load_dwordx4 v[{VP}:{VP+3}], v{VQA}, {S(RWS)}, s88 offen sc1")
        a(f"buffer_load_dwordx4 v[{VP+4}:{VP+7}], v{VQA}, {S(RWS)}, s88 offen offset:16 sc1")
    def poll_check():
        a(f"v_add_u32 v{VP+8}, 1, v{VEP}")
        a(f"v_xor_b32 v{VP+9}, v{VP+1}, v{VP+8}")
        for r in (3, 5, 7):
            a(f"v_xor_b32 v6, v{VP+r}, v{VP+8}")
            a(f"v_or_b32 v{VP+9}, v{VP+9}, v6")
        a(f"v_cmp_eq_u32 vcc, 0, v{VP+9}")
        a("s_cmp_eq_u64 vcc, exec")
    issue(0)
    issue(1)
    misc_issue()
    for i in range(32): a(f"v_mov_b32 v{O+i}, 0")
    a(f"v_mov_b32 v{M}, {f2h(-3.0e38)}")
    a(f"v_mov_b32 v{Lr}, 0")
    POLLAT = opts.get("pollat", 0)
    outstanding_after = []
    queue = [["u0", 8], ["u1", 8], ["misc", 2]]
    def wait_for(name):
        idx = [i for i, q in enumerate(queue) if q[0] == name][0]
        n = sum(q[1] for q in queue[idx + 1:])
        a(f"s_waitcnt vmcnt({n})")
        del queue[:idx + 1]
    for e in range(E):
        wait_for(f"u{e}")
        frag_reads(e & 1, XK(e), XV(e))
        a("s_waitcnt lgkmcnt(0)")
        issue(e & 1); queue.append([f"u{e+2}", 8])
        if e == POLLAT:
            poll_issue(); queue.append(["poll", 2])
    wait_for("poll")
    rem_after_poll = list(map(list, queue))
    a("s_cmp_lg_u32 s3, 0")
    a("s_cbranch_scc1 L_qbar")
    a("s_mov_b32 s14, 0")
    poll_check()
    a("s_cbranch_scc1 L_qgot")
    if opts.get("noq"): a("s_branch L_qgot")
    a.label("L_qpoll")
    a(f"s_sleep {PSLEEP}")
    poll_issue()
    a("s_waitcnt vmcnt(0)")
    poll_check()
    a("s_cbranch_scc1 L_qgot")
    a("s_add_u32 s14, s14, 1")
    a(f"s_cmp_lt_u32 s14, {SPIN_MAX}")
    a("s_cbranch_scc1 L_qpoll")
    a.label("L_qgot")
    a(f"v_mov_b32 v{VP+1}, v{VP+2}")
    a(f"v_mov_b32 v{VP+2}, v{VP+4}")
    a(f"v_mov_b32 v{VP+3}, v{VP+6}")
    a(f"v_add_u32 v6, {L_Q}, v{VL16}")
    a(f"ds_write_b128 v6, v[{VP}:{VP+3}]")
    a("s_waitcnt lgkmcnt(0)")
    a.label("L_qbar")
    a("v_lshlrev_b32 v6, 2, v1")
    a(f"v_add_u32 v6, {L_SYNC}, v6")
    a("s_mov_b64 exec, 0xff")
    a(f"ds_write_b32 v6, v{VZ}")
    a("s_mov_b64 exec, -1")
    a("s_waitcnt lgkmcnt(0)")
    a("v_and_b32 v6, 3, v1")
    a("v_lshlrev_b32 v6, 8, v6")
    a("v_lshl_add_u32 v6, v2, 4, v6")
    a(f"v_add_u32 v6, {L_Q}, v6")
    stamp(1)
    a("s_barrier")
    stamp(2)
    for s in range(4):
        a(f"ds_read_b128 v[{Q+4*s}:{Q+4*s+3}], v6 offset:{s*64}")
    def qk(kf):
        for s in range(4):
            c = "0" if s == 0 else f"v[{Sr}:{Sr+3}]"
            a(f"v_mfma_f32_16x16x32_bf16 v[{Sr}:{Sr+3}], v[{kf+4*s}:{kf+4*s+3}], v[{Q+4*s}:{Q+4*s+3}], {c}")
    def soft_pv(vf):
        a(f"v_max3_f32 v{T0}, v{Sr}, v{Sr+1}, v{Sr+2}")
        a(f"v_max_f32 v{T0}, v{T0}, v{Sr+3}")
        xrow_reduce(a, T0, T1, "v_max_f32")
        a(f"v_max_f32 v{T0}, v{T0}, v{M}")
        a(f"v_sub_f32 v{AL}, v{M}, v{T0}")
        a(f"v_mul_f32 v{AL}, s13, v{AL}")
        a(f"v_exp_f32 v{AL}, v{AL}")
        a(f"v_mov_b32 v{M}, v{T0}")
        a(f"v_mul_f32 v{NM}, s13, v{T0}")
        for r in range(4):
            a(f"v_fma_f32 v{Sr+r}, v{Sr+r}, s13, -v{NM}")
        for r in range(4):
            a(f"v_exp_f32 v{Sr+r}, v{Sr+r}")
        a(f"v_add_f32 v{T0}, v{Sr}, v{Sr+1}")
        a(f"v_add_f32 v{T1}, v{Sr+2}, v{Sr+3}")
        a(f"v_add_f32 v{T0}, v{T0}, v{T1}")
        a(f"v_fma_f32 v{Lr}, v{Lr}, v{AL}, v{T0}")
        a(f"v_cvt_pk_bf16_f32 v{P}, v{Sr}, v{Sr+1}")
        a(f"v_cvt_pk_bf16_f32 v{P+1}, v{Sr+2}, v{Sr+3}")
        for i in range(32): a(f"v_mul_f32 v{O+i}, v{O+i}, v{AL}")
        for t in range(8):
            a(f"v_mfma_f32_16x16x16_bf16 v[{O+4*t}:{O+4*t+3}], v[{vf+2*t}:{vf+2*t+1}], v[{P}:{P+1}], v[{O+4*t}:{O+4*t+3}]")
    a(f"s_sub_u32 s14, s99, {2 + E}")
    a("s_mov_b32 s12, 0")
    a("s_mov_b32 s101, 1")
    def unit(slot, first):
        a("s_cmp_eq_u32 s12, 0")
        a(f"s_cbranch_scc1 L_w8_{slot}")
        a("s_waitcnt vmcnt(0)")
        a.label(f"L_w8_{slot}")
        a("s_waitcnt vmcnt(8)")
        frag_reads(slot, KF, VF)
        a("s_waitcnt lgkmcnt(8)")
        qk(KF)
        a("s_waitcnt lgkmcnt(0)")
        a("s_mov_b32 s15, s12")
        a("s_cmp_eq_u32 s14, 0")
        a("s_cselect_b32 s12, 1, 0")
        a(f"s_cbranch_scc1 L_noiss_{slot}")
        a("s_sub_u32 s14, s14, 1")
        issue(slot)
        a.label(f"L_noiss_{slot}")
        soft_pv(VF)
        if first:
            a("s_cmp_eq_u32 s101, 0")
            a("s_cbranch_scc1 L_nox")
            a("s_mov_b32 s101, 0")
            for e in range(E):
                qk(XK(e))
                soft_pv(XV(e))
            a.label("L_nox")
        a("s_cmp_lg_u32 s15, 0")
        a("s_cbranch_scc1 L_loopend")
    fs = E & 1
    if fs == 1: a("s_branch L_u1")
    a.label("L_loop")
    unit(0, fs == 0)
    a.label("L_u1")
    unit(1, fs == 1)
    a("s_branch L_loop")
    a.label("L_loopend")
    stamp(3)
    a("s_cmp_eq_u32 s42, 0")
    a("s_cbranch_scc1 L_nomlp")
    a("s_cmp_ge_u32 s3, 4")
    a("s_cbranch_scc1 L_nomlp")
    uid = [0]
    VSY, VONE, VT = 118, 119, 120
    def lds_sync(off):
        uid[0] += 1
        a("s_waitcnt lgkmcnt(0)")
        a("s_mov_b64 exec, 1")
        a(f"ds_add_u32 v{VSY}, v{VONE} offset:{off}")
        a("s_mov_b64 exec, -1")
        a.label(f"L_ls{uid[0]}")
        a(f"ds_read_b32 v{VT}, v{VSY} offset:{off}")
        a("s_waitcnt lgkmcnt(0)")
        a(f"v_readfirstlane_b32 s11, v{VT}")
        a("s_cmp_lt_u32 s11, 4")
        a(f"s_cbranch_scc1 L_ls{uid[0]}")
    a(f"v_mov_b32 v{VSY}, {L_SYNC}")
    a(f"v_mov_b32 v{VONE}, 1")
    a("s_lshl_b32 s94, s3, 10")
    a("s_lshl_b32 s92, s4, 7")
    a(f"buffer_load_dwordx4 v[32:35], v{VL16}, {S(RX)}, s94 offen")
    a("v_lshlrev_b32 v7, 1, v1")
    a(f"buffer_load_ushort v36, v7, {S(RB)}, s92 offen")
    a("v_lshrrev_b32 v6, 3, v1")
    a("v_mul_u32_u24 v6, 3584, v6")
    a("v_and_b32 v7, 7, v1")
    a("v_lshl_add_u32 v6, v7, 4, v6")
    a(f"s_mul_i32 s9, s3, {128*3584}")
    a("s_add_u32 s9, s9, s92")
    for i in range(16):
        a(f"s_add_u32 m0, s10, {i*1024}")
        a(f"buffer_load_dwordx4 v6, {S(RW)}, s9 offen{WPOL} lds")
        if i < 15: a(f"s_add_u32 s9, s9, {8*3584}")
    a("s_waitcnt vmcnt(17)")
    X2, T2, PK2 = 80, 88, 96
    for i in range(4):
        a(f"v_lshlrev_b32 v{X2+2*i}, 16, v{32+i}")
        a(f"v_and_b32 v{X2+1+2*i}, 0xffff0000, v{32+i}")
    layernorm8(a, X2, T2, PK2)
    layernorm8(a, X2, T2, PK2)
    a(f"v_add_u32 v6, s94, v{VL16}")
    a(f"v_add_u32 v6, {L_Y}, v6")
    a(f"ds_write_b128 v6, v[{PK2}:{PK2+3}]")
    VB2, VA2, VR2 = 37, 38, 39
    a("v_and_b32 v7, 3, v1")
    a(f"v_lshlrev_b32 v{VB2}, 10, v7")
    a(f"v_lshl_add_u32 v{VB2}, v2, 3, v{VB2}")
    a("s_lshl_b32 s9, s3, 8")
    a(f"s_add_u32 s9, s9, {L_Y}")
    a(f"v_add_u32 v{VB2}, s9, v{VB2}")
    a(f"v_lshrrev_b32 v{VA2}, 2, v1")
    a(f"v_lshlrev_b32 v{VA2}, 7, v{VA2}")
    a(f"v_lshl_add_u32 v{VA2}, v7, 3, v{VA2}")
    a(f"v_add_u32 v{VA2}, s10, v{VA2}")
    a(f"v_lshlrev_b32 v{VR2}, 8, v3")
    a(f"v_lshl_add_u32 v{VR2}, v2, 4, v{VR2}")
    a("s_lshl_b32 s9, s3, 10")
    a(f"s_add_u32 s9, s9, {L_RED}")
    a(f"v_add_u32 v{VR2}, s9, v{VR2}")
    lds_sync(0)
    a("s_waitcnt vmcnt(0)")
    BF2, AF2, D3 = 80, 128, 96
    for ks in range(8):
        a(f"ds_read_b64 v[{BF2+2*ks}:{BF2+1+2*ks}], v{VB2} offset:{ks*32}")
    for half in range(2):
        for ks in range(4):
            for nb in range(4):
                r = AF2 + (ks * 4 + nb) * 2
                a(f"ds_read_b64_tr_b16 v[{r}:{r+1}], v{VA2} offset:{(half*4+ks)*2048 + nb*32}")
        a("s_waitcnt lgkmcnt(0)")
        for ks in range(4):
            for nb in range(4):
                r = AF2 + (ks * 4 + nb) * 2
                kk = half * 4 + ks
                c = "0" if kk == 0 else f"v[{D3+nb*4}:{D3+nb*4+3}]"
                a(f"v_mfma_f32_16x16x16_bf16 v[{D3+nb*4}:{D3+nb*4+3}], v[{r}:{r+1}], v[{BF2+2*kk}:{BF2+1+2*kk}], {c}")
    a("v_lshlrev_b32 v6, 10, v2")
    a("v_lshl_add_u32 v6, v3, 4, v6")
    a("s_lshl_b32 s9, s4, 16")
    a("s_lshl_b32 s11, s3, 8")
    a("s_add_u32 s9, s9, s11")
    for i in range(16):
        a(f"s_add_u32 m0, s10, {i*1024}")
        a(f"buffer_load_dwordx4 v6, {S(RW2)}, s9 offen{WPOL} lds")
        if i < 15: a("s_add_u32 s9, s9, 4096")
    a("v_cmp_gt_u32 vcc, 4, v3")
    a("s_and_saveexec_b64 s[86:87], vcc")
    for nb in range(4):
        a(f"ds_write_b128 v{VR2}, v[{D3+nb*4}:{D3+nb*4+3}] offset:{nb*64}")
    a("s_mov_b64 exec, s[86:87]")
    lds_sync(4)
    a("v_lshlrev_b32 v6, 2, v1")
    a("s_lshl_b32 s9, s3, 8")
    a(f"s_add_u32 s9, s9, {L_RED}")
    a("v_add_u32 v6, s9, v6")
    for w in range(4):
        a(f"ds_read_b32 v{80+w}, v6 offset:{w*1024}")
    a("s_waitcnt lgkmcnt(0)")
    for w in range(1, 4):
        a(f"v_add_f32 v80, v80, v{80+w}")
    bf16r(a, 80, 80)
    a("v_lshlrev_b32 v36, 16, v36")
    a("v_add_f32 v80, v80, v36")
    bf16r(a, 80, 80)
    a("v_mul_f32 v81, v80, v80")
    a(f"v_mul_f32 v81, {f2h(0.044715)}, v81")
    a("v_fma_f32 v81, v81, v80, v80")
    a(f"v_mul_f32 v81, {f2h(k1)}, v81")
    a("v_exp_f32 v81, v81")
    a("v_add_f32 v81, 1.0, v81")
    a("v_rcp_f32 v81, v81")
    a("v_mul_f32 v80, v80, v81")
    a("v_cvt_pk_bf16_f32 v81, v80, v80")
    a("v_lshlrev_b32 v6, 1, v1")
    a("s_lshl_b32 s9, s3, 7")
    a(f"s_add_u32 s9, s9, {L_ACT2}")
    a("v_add_u32 v6, s9, v6")
    a("ds_write_b16 v6, v81")
    lds_sync(8)
    a("v_and_b32 v7, 3, v1")
    a(f"v_lshlrev_b32 v{VB2}, 7, v7")
    a(f"v_lshl_add_u32 v{VB2}, v2, 3, v{VB2}")
    a(f"v_add_u32 v{VB2}, {L_ACT2}, v{VB2}")
    a(f"v_lshrrev_b32 v{VA2}, 2, v1")
    a(f"v_lshlrev_b32 v{VA2}, 8, v{VA2}")
    a(f"v_lshl_add_u32 v{VA2}, v7, 3, v{VA2}")
    a(f"v_add_u32 v{VA2}, s10, v{VA2}")
    a(f"v_add_u32 v40, 1, v{VEP}")
    a("v_lshlrev_b32 v6, 12, v3")
    a("v_lshl_add_u32 v6, v2, 5, v6")
    a("s_waitcnt vmcnt(0)")
    for ks in range(4):
        a(f"ds_read_b64 v[{BF2+2*ks}:{BF2+1+2*ks}], v{VB2} offset:{ks*32}")
    for half in range(2):
        for ks in range(4):
            for nb in range(4):
                r = AF2 + (ks * 4 + nb) * 2
                a(f"ds_read_b64_tr_b16 v[{r}:{r+1}], v{VA2} offset:{ks*4096 + (half*4+nb)*32}")
        a("s_waitcnt lgkmcnt(0)")
        for ks in range(4):
            for nb in range(4):
                r = AF2 + (ks * 4 + nb) * 2
                d = D3 + nb * 4
                c = "0" if ks == 0 else f"v[{d}:{d+3}]"
                a(f"v_mfma_f32_16x16x16_bf16 v[{d}:{d+3}], v[{r}:{r+1}], v[{BF2+2*ks}:{BF2+1+2*ks}], {c}")
        a("s_lshl_b32 s9, s4, 14")
        a("s_lshl_b32 s11, s3, 10")
        a("s_add_u32 s9, s9, s11")
        a(f"s_add_u32 s9, s9, {WS_ZP2 + half*512}")
        for nb in range(4):
            for hh in range(2):
                r = AF2 + (nb * 2 + hh) * 4
                a(f"v_mov_b32 v{r}, v{D3+nb*4+2*hh}")
                a(f"v_mov_b32 v{r+1}, v40")
                a(f"v_mov_b32 v{r+2}, v{D3+nb*4+2*hh+1}")
                a(f"v_mov_b32 v{r+3}, v40")
        a("v_cmp_gt_u32 vcc, 4, v3")
        a("s_and_saveexec_b64 s[86:87], vcc")
        for nb in range(4):
            for hh in range(2):
                r = AF2 + (nb * 2 + hh) * 4
                a(f"buffer_store_dwordx4 v[{r}:{r+3}], v6, {S(RWS)}, s9 offen offset:{nb*128 + hh*16} sc1")
        a("s_mov_b64 exec, s[86:87]")
        if half == 0: a("s_waitcnt vmcnt(0)")
    a.label("L_nomlp")
    if opts.get("touch", 1):
        a("s_cmp_ge_u32 s3, 4")
        a("s_cbranch_scc1 L_notouch")
        a(f"v_mov_b32 v80, v{VEP}")
        a(f"v_mov_b32 v81, v{VEP}")
        a(f"v_mov_b32 v82, v{VEP}")
        a(f"v_mov_b32 v83, v{VEP}")
        a(f"s_add_u32 s9, s84, {16*PSLOT}")
        a(f"buffer_store_dwordx2 v[80:81], v{VI0}, {S(RWS)}, s84 offen sc1")
        a(f"buffer_store_dwordx2 v[80:81], v{VI0}, {S(RWS)}, s9 offen sc1")
        a(f"buffer_store_dwordx4 v[80:83], v{VI1}, {S(RWS)}, s84 offen sc1")
        a(f"buffer_store_dwordx4 v[80:83], v{VI1}, {S(RWS)}, s9 offen sc1")
        a(f"v_lshlrev_b32 v84, 1, v{VI2}")
        a(f"buffer_store_dwordx2 v[80:81], v84, {S(RWS)}, s85 offen sc1")
        a("s_waitcnt vmcnt(0)")
        a.label("L_notouch")
    xrow_reduce(a, Lr, T1, "v_add_f32")
    a("v_lshlrev_b32 v6, 9, v3")
    a("v_lshl_add_u32 v6, v2, 4, v6")
    a("v_add_u32 v6, s10, v6")
    a("v_lshlrev_b32 v7, 3, v3")
    a("v_add_u32 v7, s10, v7")
    a("v_cmp_gt_u32 vcc, 4, v3")
    a("s_and_saveexec_b64 s[86:87], vcc")
    for t in range(8):
        a(f"ds_write_b128 v6, v[{O+4*t}:{O+4*t+3}] offset:{t*64}")
    a(f"ds_write_b64 v7, v[{M}:{M+1}] offset:2048")
    a("s_mov_b64 exec, s[86:87]")
    a("v_lshrrev_b32 v6, 7, v0")
    a("v_and_b32 v7, 127, v0")
    a("v_lshlrev_b32 v8, 9, v6")
    a("v_lshl_add_u32 v8, v7, 2, v8")
    a("v_lshlrev_b32 v9, 3, v6")
    a("v_add_u32 v10, 0x10000, v8")
    a("v_add_u32 v11, 0x10000, v9")
    a("s_waitcnt lgkmcnt(0)")
    a("s_barrier")
    stamp(4)
    if opts.get("x_notail"): a("s_branch L_end")
    for w in range(8):
        a(f"ds_read_b32 v{32+w}, v{8 if w < 4 else 10} offset:{(w&3)*16384}")
        a(f"ds_read_b64 v[{40+2*w}:{41+2*w}], v{9 if w < 4 else 11} offset:{(w&3)*16384+2048}")
    a("s_waitcnt lgkmcnt(0)")
    a("v_max3_f32 v12, v40, v42, v44")
    a("v_max3_f32 v12, v12, v46, v48")
    a("v_max3_f32 v12, v12, v50, v52")
    a("v_max_f32 v12, v12, v54")
    a("v_mov_b32 v14, 0")
    a("v_mov_b32 v13, 0")
    for w in range(8):
        a(f"v_sub_f32 v15, v{40+2*w}, v12")
        a("v_mul_f32 v15, s13, v15")
        a("v_exp_f32 v15, v15")
        a(f"v_fmac_f32 v14, v15, v{32+w}")
        a(f"v_fmac_f32 v13, v15, v{41+2*w}")
    VN = 60
    a(f"v_add_u32 v{VN}, 1, v{VEP}")
    a(f"v_mov_b32 v15, v{VN}")
    a(f"buffer_store_dwordx2 v[14:15], v{VI0}, {S(RWS)}, s84 offen sc1")
    a("v_mul_f32 v56, s13, v12")
    a(f"v_mov_b32 v57, v{VN}")
    a("v_mov_b32 v58, v13")
    a(f"v_mov_b32 v59, v{VN}")
    a("v_cmp_eq_u32 vcc, 0, v7")
    a("s_and_saveexec_b64 s[86:87], vcc")
    a(f"buffer_store_dwordx4 v[56:59], v{VI1}, {S(RWS)}, s84 offen sc1")
    a("s_mov_b64 exec, s[86:87]")
    a(f"s_mov_b32 s9, {256*PSLOT}")
    a("v_mul_lo_u32 v10, v6, s9")
    a("v_lshl_add_u32 v11, v7, 3, v10")
    a("v_add_u32 v10, 1024, v10")
    a(f"s_mul_i32 s9, s4, {8*PSLOT}")
    a(f"s_add_u32 s9, s9, {WS_PART2}")
    a(f"s_add_u32 s15, s9, {4*PSLOT}")
    a("v_lshlrev_b32 v15, 1, v0")
    a(f"v_add_u32 v15, {L_OACT}, v15")
    a("v_and_b32 v14, 3, v1")
    a("v_lshlrev_b32 v16, 8, v14")
    a("v_lshl_add_u32 v16, v2, 3, v16")
    a(f"v_add_u32 v16, {L_OACT}, v16")
    a("v_lshrrev_b32 v17, 2, v1")
    a("v_lshlrev_b32 v17, 7, v17")
    a("v_lshl_add_u32 v17, v14, 3, v17")
    a("s_and_b32 s11, s3, 3")
    a("s_lshl_b32 s11, s11, 5")
    a(f"s_add_u32 s11, s11, {L_WO}")
    a("v_add_u32 v17, s11, v17")
    WF = 128
    for ks in range(8):
        a(f"ds_read_b64_tr_b16 v[{WF+2*ks}:{WF+1+2*ks}], v17 offset:{ks*2048}")
    a("v_lshlrev_b32 v18, 9, v3")
    a("v_lshl_add_u32 v18, v2, 4, v18")
    a("s_and_b32 s11, s3, 3")
    a("s_lshl_b32 s11, s11, 7")
    a("v_add_u32 v18, s11, v18")
    ZR = 144
    a("s_cmp_lt_u32 s2, 224")
    a("s_cbranch_scc1 L_s3pre_done")
    a("s_and_b32 s6, s4, 3")
    a("v_lshlrev_b32 v5, 3, v1")
    a("v_lshlrev_b32 v6, 1, v1")
    a("s_lshl_b32 s92, s3, 14")
    a("s_lshl_b32 s11, s6, 12")
    a("s_add_u32 s92, s92, s11")
    a("s_lshl_b32 s11, s5, 9")
    a("s_add_u32 s92, s92, s11")
    a(f"s_add_u32 s92, s92, {WS_ZP2}")
    a("s_add_u32 s88, s92, 131072")
    a("s_add_u32 s89, s92, 262144")
    a("s_add_u32 s90, s92, 393216")
    a("s_cmp_lt_u32 s3, 4")
    a("s_cselect_b32 s90, s90, s92")
    srd(a, RB, P_B2, 1024)
    a("s_lshl_b32 s11, s5, 7")
    a(f"buffer_load_ushort v{ZR+8}, v6, {S(RB)}, s11 offen")
    a("s_lshl_b32 s94, s6, 10")
    a("s_add_u32 s94, s94, s11")
    a(f"buffer_load_ushort v{ZR+9}, v6, {S(RX)}, s94 offen")
    for i, so in enumerate(("s92", "s88", "s89", "s90")):
        a(f"buffer_load_dwordx2 v[{ZR+2*i}:{ZR+1+2*i}], v5, {S(RWS)}, {so} offen sc1")
    a("s_lshl_b32 s93, s5, 16")
    a("s_lshl_b32 s11, s3, 13")
    a("s_add_u32 s93, s93, s11")
    a("s_lshl_b32 s11, s6, 9")
    a("s_add_u32 s93, s93, s11")
    a(f"s_add_u32 s93, s93, {WS_SP2}")
    a("s_add_u32 s91, s93, 4096")
    a("v_lshlrev_b32 v4, 7, v2")
    a("v_bfe_u32 v7, v1, 1, 1")
    a("v_lshl_add_u32 v4, v7, 6, v4")
    a("v_bfe_u32 v7, v1, 2, 2")
    a("v_lshl_add_u32 v4, v7, 4, v4")
    a("v_and_b32 v7, 1, v1")
    a("v_lshl_add_u32 v4, v7, 3, v4")
    a.label("L_s3pre_done")
    stamp(5)
    PO, PM = 72, 88
    LITE = opts.get("lite", 1)
    a("v_and_b32 v21, 7, v1")
    a(f"v_mul_u32_u24 v21, {PSLOT}, v21")
    a("v_add_u32 v21, v21, v10")
    a("s_mov_b32 s14, 0")
    a("s_mov_b32 s12, 0")
    a.label("L_s2poll")
    for sp in range(8):
        so = "s9" if sp < 4 else "s15"
        a(f"s_bitcmp1_b32 s12, {sp}")
        a(f"s_cbranch_scc1 L_s2sk{sp}")
        a(f"buffer_load_dwordx4 v[{PM+4*sp}:{PM+4*sp+3}], v10, {S(RWS)}, {so} offen offset:{(sp&3)*PSLOT} sc1")
        a(f"buffer_load_dwordx2 v[{PO+2*sp}:{PO+2*sp+1}], v11, {S(RWS)}, {so} offen offset:{(sp&3)*PSLOT} sc1")
        a.raw(f"L_s2sk{sp}:")
    a("s_waitcnt vmcnt(0)")
    for sp in range(8):
        a(f"v_xor_b32 v12, v{PM+4*sp+1}, v{VN}")
        a(f"v_xor_b32 v13, v{PM+4*sp+3}, v{VN}")
        a(f"v_xor_b32 v14, v{PO+2*sp+1}, v{VN}")
        a("v_or3_b32 v12, v12, v13, v14")
        a("v_cmp_eq_u32 vcc, 0, v12")
        a("s_cmp_eq_u64 vcc, exec")
        a(f"s_cselect_b32 s11, {1 << sp}, 0")
        a("s_or_b32 s12, s12, s11")
    a("s_cmp_eq_u32 s12, 0xff")
    a("s_cbranch_scc1 L_s2go")
    a("s_add_u32 s14, s14, 1")
    a(f"s_cmp_ge_u32 s14, {SPIN_MAX}")
    a("s_cbranch_scc1 L_s2go")
    a("s_bcnt1_i32_b32 s11, s12")
    a(f"s_cmp_lt_u32 s11, {8 - LITE}")
    a("s_cbranch_scc1 L_s2lite")
    a(f"s_sleep {opts.get('s2sleep2', 1)}")
    a("s_branch L_s2poll")
    a.label("L_s2lite")
    a("s_xor_b32 s11, s12, 0xff")
    a("s_mov_b32 exec_lo, s11")
    a("s_mov_b32 exec_hi, 0")
    a.label("L_s2pre")
    a(f"s_sleep {opts.get('s2sleep', 8)}")
    a(f"buffer_load_dwordx2 v[24:25], v21, {S(RWS)}, s9 offen sc1")
    a("s_waitcnt vmcnt(0)")
    a(f"v_cmp_ne_u32 vcc, v25, v{VN}")
    a("s_and_b64 exec, exec, vcc")
    a("s_bcnt1_i32_b32 s11, exec_lo")
    a(f"s_cmp_le_u32 s11, {LITE}")
    a("s_cbranch_scc1 L_s2pre_done")
    a("s_add_u32 s14, s14, 1")
    a(f"s_cmp_lt_u32 s14, {SPIN_MAX}")
    a("s_cbranch_scc1 L_s2pre")
    a.label("L_s2pre_done")
    a("s_mov_b64 exec, -1")
    a("s_branch L_s2poll")
    a.label("L_s2go")
    stamp(6)
    a(f"v_max3_f32 v12, v{PM}, v{PM+4}, v{PM+8}")
    a(f"v_max3_f32 v12, v12, v{PM+12}, v{PM+16}")
    a(f"v_max3_f32 v12, v12, v{PM+20}, v{PM+24}")
    a(f"v_max_f32 v12, v12, v{PM+28}")
    a("v_mov_b32 v13, 0")
    a("v_mov_b32 v14, 0")
    for sp in range(8):
        a(f"v_sub_f32 v{40+sp}, v{PM+4*sp}, v12")
        a(f"v_exp_f32 v{40+sp}, v{40+sp}")
    for sp in range(8):
        a(f"v_fmac_f32 v13, v{40+sp}, v{PO+2*sp}")
        a(f"v_fmac_f32 v14, v{40+sp}, v{PM+4*sp+2}")
    a("v_rcp_f32 v14, v14")
    a("v_mul_f32 v13, v13, v14")
    a("v_cvt_pk_bf16_f32 v13, v13, v13")
    a("ds_write_b16 v15, v13")
    a("s_waitcnt lgkmcnt(0)")
    a("s_barrier")
    a("s_cmp_ge_u32 s3, 4")
    a("s_cbranch_scc1 L_s3")
    for ks in range(8):
        a(f"ds_read_b64 v[{72+2*ks}:{73+2*ks}], v16 offset:{ks*32}")
    for ks in range(8):
        a(f"s_waitcnt lgkmcnt({7-ks})")
        c = "0" if ks == 0 else "v[32:35]"
        a(f"v_mfma_f32_16x16x16_bf16 v[32:35], v[{WF+2*ks}:{WF+1+2*ks}], v[{72+2*ks}:{73+2*ks}], {c}")
    a(f"v_mov_b32 v41, v{VN}")
    a(f"v_mov_b32 v43, v{VN}")
    a(f"v_mov_b32 v45, v{VN}")
    a(f"v_mov_b32 v47, v{VN}")
    a("v_cmp_gt_u32 vcc, 4, v3")
    a("v_mov_b32 v40, v32")
    a("v_mov_b32 v42, v33")
    a("v_mov_b32 v44, v34")
    a("v_mov_b32 v46, v35")
    a("s_and_saveexec_b64 s[86:87], vcc")
    a(f"buffer_store_dwordx4 v[40:43], v18, {S(RWS)}, s85 offen sc1")
    a(f"buffer_store_dwordx4 v[44:47], v18, {S(RWS)}, s85 offen offset:64 sc1")
    a("s_mov_b64 exec, s[86:87]")
    a.label("L_s3")
    stamp(7)
    a("s_cmp_lt_u32 s2, 224")
    a("s_cbranch_scc1 L_end")
    a("s_mov_b32 s14, 0")
    a("s_branch L_s3poll")
    a.label("L_s3zpoll")
    for i, so in enumerate(("s92", "s88", "s89", "s90")):
        a(f"buffer_load_dwordx2 v[{ZR+2*i}:{ZR+1+2*i}], v5, {S(RWS)}, {so} offen sc1")
    a.label("L_s3poll")
    for i in range(4):
        so = "s93" if i < 2 else "s91"
        a(f"buffer_load_dwordx2 v[{72+2*i}:{73+2*i}], v4, {S(RWS)}, {so} offen offset:{(i&1)*2048} sc1")
    a("s_waitcnt vmcnt(0)")
    a("s_add_u32 s14, s14, 1")
    a(f"s_cmp_ge_u32 s14, {SPIN_MAX}")
    a("s_cbranch_scc1 L_s3go")
    a(f"v_xor_b32 v12, v{ZR+1}, v{VN}")
    for r in range(ZR + 3, ZR + 8, 2):
        a(f"v_xor_b32 v13, v{r}, v{VN}")
        a("v_or_b32 v12, v12, v13")
    a("v_cmp_eq_u32 vcc, 0, v12")
    a("s_cmp_eq_u64 vcc, exec")
    a("s_cbranch_scc0 L_s3zpoll")
    a(f"v_xor_b32 v12, v73, v{VN}")
    for r in range(75, 80, 2):
        a(f"v_xor_b32 v13, v{r}, v{VN}")
        a("v_or_b32 v12, v12, v13")
    a("v_cmp_eq_u32 vcc, 0, v12")
    a("s_cmp_eq_u64 vcc, exec")
    a("s_cbranch_scc1 L_s3go")
    if opts.get("s3sleep", 1): a(f"s_sleep {opts.get('s3sleep', 1)}")
    a("s_branch L_s3poll")
    a.label("L_s3go")
    stamp(8)
    a("v_add_f32 v32, v72, v74")
    a("v_add_f32 v34, v76, v78")
    a("v_add_f32 v32, v32, v34")
    a(f"v_add_f32 v33, v{ZR}, v{ZR+2}")
    a(f"v_add_f32 v33, v33, v{ZR+4}")
    a("s_cmp_lt_u32 s3, 4")
    a("s_cbranch_scc0 L_s3noz")
    a(f"v_add_f32 v33, v33, v{ZR+6}")
    a.label("L_s3noz")
    a("v_lshlrev_b32 v7, 3, v1")
    a("s_lshl_b32 s9, s3, 9")
    a(f"s_add_u32 s9, s9, {L_S3}")
    a("v_add_u32 v8, s9, v7")
    a("ds_write_b64 v8, v[32:33]")
    a("s_waitcnt lgkmcnt(0)")
    a("s_barrier")
    a("s_cmp_lg_u32 s3, 0")
    a("s_cbranch_scc1 L_end")
    a(f"v_add_u32 v8, {L_S3}, v7")
    for w in range(8):
        a(f"ds_read_b64 v[{16+2*w}:{17+2*w}], v8 offset:{w*512}")
    a("s_waitcnt lgkmcnt(0)")
    for w in range(1, 8):
        a(f"v_add_f32 v16, v16, v{16+2*w}")
        a(f"v_add_f32 v17, v17, v{17+2*w}")
    bf16r(a, 16, 16)
    bf16r(a, 17, 17)
    a(f"v_lshlrev_b32 v44, 16, v{ZR+8}")
    a(f"v_lshlrev_b32 v45, 16, v{ZR+9}")
    a("v_add_f32 v17, v17, v44")
    bf16r(a, 17, 17)
    a(f"v_mul_f32 v10, {f2h(-LOG2E)}, v17")
    a("v_exp_f32 v10, v10")
    a("v_add_f32 v10, 1.0, v10")
    a("v_rcp_f32 v10, v10")
    a("v_mul_f32 v17, v17, v10")
    bf16r(a, 17, 17)
    a("v_mul_f32 v16, v16, v17")
    bf16r(a, 16, 16)
    a("v_add_f32 v16, v16, v45")
    a("v_cvt_pk_bf16_f32 v16, v16, v16")
    a(f"buffer_store_short v16, v6, {S(ROUT)}, s94 offen")
    a("s_cmp_lg_u32 s2, 255")
    a("s_cbranch_scc1 L_end")
    a("v_mov_b32 v17, 1")
    a("v_mov_b32 v18, 0")
    a(f"s_mov_b32 s9, {WS_EPOCH}")
    a("s_mov_b64 exec, 1")
    a(f"buffer_atomic_add v17, v18, {S(RWS)}, s9 offen")
    a("s_mov_b64 exec, -1")
    a.label("L_end")
    if STAMP:
        stamp(9)
        a("s_lshl_b32 s9, s2, 10")
        a("s_lshl_b32 s11, s3, 6")
        a("s_add_u32 s9, s9, s11")
        a(f"s_add_u32 s9, s9, {WS_TS}")
        a("v_lshlrev_b32 v6, 2, v1")
        a("v_cmp_gt_u32 vcc, 16, v1")
        a("s_and_saveexec_b64 s[86:87], vcc")
        a(f"buffer_store_dword v{VST}, v6, {S(RWS)}, s9 offen")
    a.label("L_exit")
    a("s_endpgm")
    hdr = f"""; @launch grid=(256,1,1) block=(512,1,1) lds=163840
.amdgcn_target "amdgcn-amd-amdhsa--gfx950"
.text
"""
    return hdr + kernel_begin(KN) + a.text() + '.section .rodata,"a"\n.p2align 6\n' + kd(KN, NV)

if __name__ == "__main__":
    import json
    out = sys.argv[1]
    opts = json.loads(sys.argv[2]) if len(sys.argv) > 2 else {}
    open(out, "w").write(gen(opts))
```

```python
import struct, math, sys
from asmdsl import Asm
from gen_v1 import *

KN = NAME + "_kernel"
L_WO, L_XN, L_Y, L_RED = 131072, 147456, 151552, 155648
L_Q = L_XN
L_ACT2 = L_XN + 2048
L_OACT = L_XN + 3072
L_S3 = L_Y
L_SYNC = L_XN + 1536
SPIN_MAX = 1 << 20
WS_TS = 4 << 20
WS_EPOCH = 3 << 20
WS_QG = 2 << 20
PSLOT = 1152
WS_PART2 = 5 << 20
WS_SP2 = 7 << 20
WS_ZP2 = 8 << 20

def gen(opts=None):
    opts = opts or {}
    STAMP = opts.get("stamp", 0)
    PSLEEP = opts.get("psleep", 2)
    E = opts.get("E", 2)
    NV = 128 + 32 * E + 16
    VST = NV - 1
    VP = 128 + 32 * E
    POL = {"nt": " nt", "def": "", "sc1": " sc1", "sc0sc1": " sc0 sc1"}
    KPOL = POL[opts.get("kpol", "nt")]; VPOL = POL[opts.get("vpol", "nt")]; WPOL = POL[opts.get("wpol", "nt")]
    a = Asm()
    RK_, RV_, RWS, RW, RX, RW2, RWO, RDBG, RB, ROUT = 44, 48, 52, 56, 60, 64, 68, 72, 76, 80
    def S(r): return f"s[{r}:{r+3}]"
    def stamp(idx):
        if not STAMP: return
        a("s_memrealtime s[96:97]")
        a("s_waitcnt lgkmcnt(0)")
        a(f"v_writelane_b32 v{VST}, s96, {idx}")
    a("s_cmp_ge_u32 s2, 256")
    a("s_cbranch_scc1 L_exit")
    if STAMP: a(f"v_mov_b32 v{VST}, 0")
    stamp(0)
    load_ptrs(a)
    lane_decode(a)
    a("s_lshr_b32 s4, s2, 3")
    a("s_and_b32 s5, s2, 7")
    a("s_lshr_b32 s6, s4, 3")
    a("s_and_b32 s7, s4, 7")
    a("s_lshl_b32 s10, s3, 14")
    VK, VV, RK, RV, VW, VL16 = 8, 12, 14, 18, 26, 27
    VI0, VI1, VI2, VZ = 28, 29, 30, 31
    a(f"v_lshlrev_b32 v{VL16}, 4, v1")
    a("v_lshrrev_b32 v6, 3, v1")
    a("v_and_b32 v7, 7, v1")
    a("v_lshlrev_b32 v7, 4, v7")
    a(f"v_lshl_add_u32 v{VW}, v6, 10, v7")
    a(f"v_mov_b32 v{VZ}, 0")
    a("s_sub_u32 s100, s5, s4")
    a("s_and_b32 s100, s100, 7")
    a("s_cmp_lt_u32 s4, 28")
    a("s_cselect_b32 s98, 2, 0")
    a("s_cmp_eq_u32 s100, 2")
    a("s_cselect_b32 s98, s98, 0")
    a("s_cmp_lt_u32 s100, 2")
    a("s_cselect_b32 s98, 1, s98")
    if opts.get("norole"): a("s_mov_b32 s98, 0")
    a("s_cmp_eq_u32 s98, 2")
    a("s_cselect_b32 s42, 1, 0")
    a("s_cselect_b32 s98, 0, s98")
    a("s_lshl_b32 s89, s4, 1")
    a("s_add_u32 s89, s89, s100")
    a("s_mov_b32 s90, 3584")
    a(f"s_mov_b32 s91, {L_Y}")
    a(f"s_mov_b32 s{RW+2}, {512*1792*2}")
    a("s_cmp_eq_u32 s98, 1")
    a("s_cselect_b32 s89, s89, s4")
    a("s_cselect_b32 s90, 8192, s90")
    a(f"s_cselect_b32 s91, {L_XN}, s91")
    a(f"s_cselect_b32 s{RW+2}, {512*4096*2}, s{RW+2}")
    a(f"s_mov_b32 s{RW+3}, 0x20000")
    a("s_lshl_b32 s92, s89, 7")
    a("v_mul_lo_u32 v6, v6, s90")
    a("v_add_u32 v6, v6, v7")
    a("s_and_b32 s93, s3, 3")
    a("s_lshl_b32 s94, s93, 10")
    a("s_lshl_b32 s9, s3, 6")
    a("s_mul_i32 s9, s9, s90")
    a("s_add_u32 s9, s9, s92")
    a("s_lshl_b32 s11, s90, 3")
    a("v_lshlrev_b32 v7, 1, v1")
    a(f"s_mov_b32 s12, {WS_EPOCH}")
    a("s_waitcnt lgkmcnt(0)")
    a("s_cmp_eq_u32 s98, 1")
    a(f"s_cselect_b32 s{RW}, s{P_WQ}, s{P_W1}")
    a(f"s_cselect_b32 s{RW+1}, s{P_WQ+1}, s{P_W1+1}")
    srd(a, RX, P_X, 4096)
    srd(a, RWS, P_WS, WS_SIZE)
    srd(a, RB, P_B1, 1792 * 2)
    srd(a, RW2, P_W2, 1792 * 512 * 2)
    VEP = VP + 10
    a(f"buffer_load_dword v{VEP}, v{VZ}, {S(RWS)}, s12 offen sc1")
    a("s_cmp_eq_u32 s98, 0")
    a("s_cbranch_scc1 L_setup")
    a(f"buffer_load_dwordx4 v[48:51], v{VL16}, {S(RX)}, s94 offen")
    a(f"buffer_load_ushort v52, v7, {S(RB)}, s92 offen")
    for i in range(8):
        a(f"s_add_u32 m0, s10, {8192 + i*1024}")
        a(f"buffer_load_dwordx4 v6, {S(RW)}, s9 offen{WPOL} lds")
        if i < 7: a("s_add_u32 s9, s9, s11")
    a("s_cmp_eq_u32 s98, 1")
    a("s_cbranch_scc1 L_setup")
    a("s_lshl_b32 s9, s89, 16")
    a("s_lshl_b32 s11, s3, 7")
    a("s_add_u32 s9, s9, s11")
    for i in range(8):
        a(f"s_add_u32 m0, s10, {i*1024}")
        a(f"buffer_load_dwordx4 v{VW}, {S(RW2)}, s9 offen{WPOL} lds")
        if i < 7: a("s_add_u32 s9, s9, 8192")
    a.label("L_setup")
    stamp(10)
    srd(a, RK_, P_K, 128 << 20)
    srd(a, RV_, P_V, 128 << 20)
    srd(a, RWO, P_WO, 4096 * 512 * 2)
    srd(a, RDBG, P_DBG, 256)
    srd(a, ROUT, P_OUT, 4096)
    NQ, NM_ = opts.get("nq", 16), opts.get("nm", 16)
    def mk(counts):
        starts = [sum(counts[:i]) for i in range(8)]
        pk = lambda v: sum(x << (8 * i) for i, x in enumerate(v))
        return pk(counts), pk(starts)
    def spread(total, n):
        base = total // n; r = total - base * n
        return [base + (1 if i >= n - r else 0) for i in range(n)]
    cA, sA = mk([NQ, NQ, NM_] + spread(128 - 2 * NQ - NM_, 5))
    cB, sB = mk([NQ, NQ] + spread(128 - 2 * NQ, 6))
    a(f"s_mov_b32 s24, {cA & 0xffffffff}"); a(f"s_mov_b32 s25, {cA >> 32}")
    a(f"s_mov_b32 s26, {sA & 0xffffffff}"); a(f"s_mov_b32 s27, {sA >> 32}")
    a(f"s_mov_b32 s28, {cB & 0xffffffff}"); a(f"s_mov_b32 s29, {cB >> 32}")
    a(f"s_mov_b32 s30, {sB & 0xffffffff}"); a(f"s_mov_b32 s31, {sB >> 32}")
    a("s_cmp_lt_u32 s4, 28")
    a("s_cselect_b64 s[24:25], s[24:25], s[28:29]")
    a("s_cselect_b64 s[26:27], s[26:27], s[30:31]")
    a("s_lshl_b32 s9, s100, 3")
    a("s_lshr_b64 s[24:25], s[24:25], s9")
    a("s_lshr_b64 s[26:27], s[26:27], s9")
    a("s_and_b32 s99, s24, 0xff")
    a("s_and_b32 s9, s26, 0xff")
    a("s_lshl_b32 s8, s4, 22")
    a("s_lshl_b32 s9, s9, 15")
    a("s_add_u32 s8, s8, s9")
    a("s_lshl_b32 s9, s3, 12")
    a("s_add_u32 s8, s8, s9")
    a(f"s_mov_b32 s13, {f2h(CSCALE)}")
    a("v_xor_b32 v5, v3, v2")
    for i in range(4):
        a(f"v_xor_b32 v6, {4*i}, v5")
        a("v_lshlrev_b32 v6, 4, v6")
        a(f"v_lshl_add_u32 v{VK+i}, v2, 8, v6")
    for i in range(2):
        a(f"v_add_u32 v6, {4*i}, v2")
        a("v_lshlrev_b32 v6, 1, v6")
        a("v_xor_b32 v6, v6, v3")
        a("v_lshlrev_b32 v6, 4, v6")
        a(f"v_lshl_add_u32 v{VV+i}, v2, 8, v6")
    a("v_lshrrev_b32 v6, 7, v0")
    a(f"v_mul_u32_u24 v6, {8*PSLOT}, v6")
    a("v_and_b32 v7, 127, v0")
    a(f"v_lshl_add_u32 v{VI0}, v7, 3, v6")
    a(f"v_add_u32 v{VI1}, 1024, v6")
    a("v_and_b32 v7, 255, v0")
    a(f"v_lshlrev_b32 v{VI2}, 2, v7")
    a(f"s_mul_i32 s84, s4, {32*PSLOT}")
    a(f"s_mul_i32 s9, s5, {PSLOT}")
    a("s_add_u32 s84, s84, s9")
    a(f"s_add_u32 s84, s84, {WS_PART2}")
    a("s_lshl_b32 s85, s5, 5")
    a("s_add_u32 s85, s85, s4")
    a("s_lshl_b32 s85, s85, 11")
    a(f"s_add_u32 s85, s85, {WS_SP2}")
    for s in range(4):
        a(f"v_xor_b32 v6, {4*s}, v5")
        a("v_lshlrev_b32 v6, 4, v6")
        a("v_lshl_add_u32 v6, v3, 8, v6")
        a(f"v_add_u32 v{RK+s}, s10, v6")
    a("v_lshrrev_b32 v6, 2, v1")
    a("v_and_b32 v7, 7, v6")
    a("v_lshlrev_b32 v6, 8, v6")
    a("v_and_b32 v32, 3, v1")
    a("v_lshl_add_u32 v6, v32, 3, v6")
    a("v_add_u32 v6, s10, v6")
    for t in range(8):
        a(f"v_xor_b32 v33, {t}, v7")
        a(f"v_lshl_add_u32 v{RV+t}, v33, 5, v6")
    VQA = VP + 11
    a(f"v_lshlrev_b32 v{VQA}, 5, v1")
    a("s_lshl_b32 s88, s6, 14")
    a("s_lshl_b32 s11, s7, 11")
    a("s_add_u32 s88, s88, s11")
    a(f"s_add_u32 s88, s88, {WS_QG}")

    def issue(slot):
        a(f"s_add_u32 m0, s10, {slot*8192}")
        for i in range(4):
            a(f"buffer_load_dwordx4 v{VK+i}, {S(RK_)}, s8 offen offset:{i*1024}{KPOL} lds")
        a(f"s_add_u32 m0, s10, {slot*8192 + 4096}")
        for i in range(4):
            a(f"buffer_load_dwordx4 v{VV+(i&1)}, {S(RV_)}, s8 offen offset:{i*1024}{VPOL} lds")
        a("s_add_u32 s8, s8, 32768")
    def misc_issue():
        a("s_lshl_b32 s9, s4, 7")
        a("s_lshl_b32 s11, s3, 4")
        a("s_add_u32 s9, s9, s11")
        a("s_lshl_b32 s9, s9, 10")
        a("s_lshl_b32 s11, s5, 7")
        a("s_add_u32 s9, s9, s11")
        a("s_lshl_b32 s11, s3, 11")
        a(f"s_add_u32 m0, s11, {L_WO}")
        a(f"buffer_load_dwordx4 v{VW}, {S(RWO)}, s9 offen{WPOL} lds")
        a("s_add_u32 s9, s9, 8192")
        a(f"s_add_u32 m0, s11, {L_WO + 1024}")
        a(f"buffer_load_dwordx4 v{VW}, {S(RWO)}, s9 offen{WPOL} lds")
        T0_ = opts.get("touch0", 0)
        if T0_:
            a("s_waitcnt vmcnt(18)")
            for r in range(112, 116): a(f"v_mov_b32 v{r}, v{VEP}")
            a(f"s_mul_i32 s9, s3, {8*PSLOT}")
            a("s_add_u32 s9, s9, s84")
            a("s_sub_u32 s11, s3, 4")
            a("s_lshl_b32 s11, s11, 9")
            a("s_add_u32 s11, s11, s85")
            a("s_cmp_lt_u32 s3, 4")
            a("s_cselect_b32 s9, s9, s11")
            a("s_cselect_b32 s86, -1, -1")
            a("s_cselect_b32 s87, -1, 0")
            a("s_add_u32 s11, s9, 1024")
            a("s_cmp_lt_u32 s3, 4")
            a("s_cselect_b32 s11, s11, s9")
            a("s_mov_b64 exec, s[86:87]")
            a(f"buffer_store_dwordx4 v[112:115], v{VL16}, {S(RWS)}, s9 offen sc1")
            a("s_mov_b64 exec, 0xff")
            a(f"buffer_store_dwordx4 v[112:115], v{VL16}, {S(RWS)}, s11 offen sc1")
            a("s_mov_b64 exec, -1")

    a("s_cmp_eq_u32 s98, 0")
    a("s_cbranch_scc1 L_pissue")
    a("s_cmp_eq_u32 s98, 1")
    a("s_cbranch_scc1 L_now2")
    a("s_waitcnt vmcnt(17)")
    a("s_branch L_xin")
    a.label("L_now2")
    a("s_waitcnt vmcnt(9)")
    a.label("L_xin")
    stamp(11)
    X, T, PK = 56, 64, 72
    for i in range(4):
        a(f"v_lshlrev_b32 v{X+2*i}, 16, v{48+i}")
        a(f"v_and_b32 v{X+1+2*i}, 0xffff0000, v{48+i}")
    layernorm8(a, X, T, PK)
    a(f"v_add_u32 v6, s94, v{VL16}")
    a(f"v_add_u32 v6, {L_XN}, v6")
    VB, VA = 53, 54
    a(f"v_and_b32 v7, 3, v1")
    a(f"v_lshlrev_b32 v{VB}, 10, v7")
    a(f"v_lshl_add_u32 v{VB}, v2, 3, v{VB}")
    a("s_lshl_b32 s9, s3, 7")
    a("s_add_u32 s9, s9, s91")
    a(f"v_add_u32 v{VB}, s9, v{VB}")
    a(f"v_lshrrev_b32 v{VA}, 2, v1")
    a(f"v_lshlrev_b32 v{VA}, 7, v{VA}")
    a(f"v_lshl_add_u32 v{VA}, v7, 3, v{VA}")
    a(f"v_add_u32 v{VA}, s10, v{VA}")
    a("v_lshlrev_b32 v55, 8, v3")
    a("v_lshl_add_u32 v55, v2, 4, v55")
    a("s_lshl_b32 s9, s3, 10")
    a(f"s_add_u32 s9, s9, {L_RED}")
    a("v_add_u32 v55, s9, v55")
    a("s_cmp_eq_u32 s98, 1")
    a("s_cbranch_scc1 L_lnq")
    layernorm8(a, X, T, PK)
    a(f"ds_write_b128 v6, v[{PK}:{PK+3}] offset:{L_Y - L_XN}")
    a("s_waitcnt vmcnt(8) lgkmcnt(0)")
    a("s_branch L_p1")
    a.label("L_lnq")
    a(f"ds_write_b128 v6, v[{PK}:{PK+3}]")
    stamp(12)
    a("s_waitcnt vmcnt(0) lgkmcnt(0)")
    a.label("L_p1")
    stamp(13)
    a("s_barrier")
    stamp(14)
    BF, AF, D = 56, 64, 96
    def gemv_reads(base):
        for ks in range(4):
            a(f"ds_read_b64 v[{BF+2*ks}:{BF+1+2*ks}], v{VB} offset:{ks*32}")
        for ks in range(4):
            for nb in range(4):
                r = AF + (ks * 4 + nb) * 2
                a(f"ds_read_b64_tr_b16 v[{r}:{r+1}], v{VA} offset:{base + ks*2048 + nb*32}")
        a("s_waitcnt lgkmcnt(0)")
    def gemv_mfma():
        for ks in range(4):
            for nb in range(4):
                r = AF + (ks * 4 + nb) * 2
                c = "0" if ks == 0 else f"v[{D+nb*4}:{D+nb*4+3}]"
                a(f"v_mfma_f32_16x16x16_bf16 v[{D+nb*4}:{D+nb*4+3}], v[{r}:{r+1}], v[{BF+2*ks}:{BF+1+2*ks}], {c}")
    gemv_reads(8192)
    gemv_mfma()
    a("v_cmp_gt_u32 vcc, 4, v3")
    a("s_and_saveexec_b64 s[86:87], vcc")
    for nb in range(4):
        a(f"ds_write_b128 v55, v[{D+nb*4}:{D+nb*4+3}] offset:{nb*64}")
    a("s_mov_b64 exec, s[86:87]")
    a("s_waitcnt lgkmcnt(0)")
    a("s_barrier")
    stamp(15)
    a("s_cmp_eq_u32 s98, 1")
    a("s_cbranch_scc0 L_mlp2")
    a("s_cmp_ge_u32 s3, 2")
    a("s_cbranch_scc1 L_q_bar")
    a("v_lshlrev_b32 v6, 3, v1")
    a("s_lshl_b32 s9, s3, 9")
    a(f"s_add_u32 s9, s9, {L_RED}")
    a("v_add_u32 v6, s9, v6")
    for w in range(8):
        a(f"ds_read_b64 v[{56+2*w}:{57+2*w}], v6 offset:{w*1024}")
    a("v_and_b32 v7, 31, v1")
    a("v_lshlrev_b32 v7, 3, v7")
    a("v_lshrrev_b32 v53, 5, v1")
    a("v_lshl_add_u32 v7, v53, 14, v7")
    a("s_lshl_b32 s9, s89, 8")
    a("s_lshl_b32 s11, s3, 15")
    a("s_add_u32 s9, s9, s11")
    a(f"s_add_u32 s9, s9, {WS_QG}")
    a("s_waitcnt lgkmcnt(0)")
    for w in range(1, 8):
        a(f"v_add_f32 v56, v56, v{56+2*w}")
        a(f"v_add_f32 v57, v57, v{57+2*w}")
    a("v_cvt_pk_bf16_f32 v56, v56, v57")
    a(f"v_add_u32 v57, 1, v{VEP}")
    a(f"buffer_store_dwordx2 v[56:57], v7, {S(RWS)}, s9 offen sc1")
    a.label("L_q_bar")
    a("s_barrier")
    a("s_branch L_pissue")
    a.label("L_mlp2")
    a("v_lshlrev_b32 v6, 2, v1")
    a("s_lshl_b32 s9, s93, 8")
    a(f"s_add_u32 s9, s9, {L_RED}")
    a("v_add_u32 v6, s9, v6")
    for w in range(8):
        a(f"ds_read_b32 v{56+w}, v6 offset:{w*1024}")
    a("s_waitcnt lgkmcnt(0)")
    for w in range(1, 8):
        a(f"v_add_f32 v56, v56, v{56+w}")
    bf16r(a, 56, 56)
    a("v_lshlrev_b32 v52, 16, v52")
    a("v_add_f32 v56, v56, v52")
    bf16r(a, 56, 56)
    k1 = -2.0 * LOG2E * math.sqrt(2.0 / math.pi)
    a("v_mul_f32 v57, v56, v56")
    a(f"v_mul_f32 v57, {f2h(0.044715)}, v57")
    a("v_fma_f32 v57, v57, v56, v56")
    a(f"v_mul_f32 v57, {f2h(k1)}, v57")
    a("v_exp_f32 v57, v57")
    a("v_add_f32 v57, 1.0, v57")
    a("v_rcp_f32 v57, v57")
    a("v_mul_f32 v56, v56, v57")
    a("v_cvt_pk_bf16_f32 v57, v56, v56")
    a("v_lshlrev_b32 v6, 1, v1")
    a("s_lshl_b32 s9, s93, 7")
    a(f"s_add_u32 s9, s9, {L_ACT2}")
    a("v_add_u32 v6, s9, v6")
    a("ds_write_b16 v6, v57")
    a("s_waitcnt lgkmcnt(0)")
    a("s_barrier")
    a("v_and_b32 v7, 3, v1")
    a(f"v_lshlrev_b32 v{VB}, 7, v7")
    a(f"v_lshl_add_u32 v{VB}, v2, 3, v{VB}")
    a(f"v_add_u32 v{VB}, {L_ACT2}, v{VB}")
    a("s_waitcnt vmcnt(0)")
    gemv_reads(0)
    gemv_mfma()
    a("v_lshlrev_b32 v6, 12, v3")
    a("v_lshl_add_u32 v6, v2, 5, v6")
    a("s_lshl_b32 s9, s89, 14")
    a("s_lshl_b32 s11, s3, 9")
    a("s_add_u32 s9, s9, s11")
    a(f"s_add_u32 s9, s9, {WS_ZP2}")
    a(f"v_add_u32 v7, 1, v{VEP}")
    for nb in range(4):
        for hh in range(2):
            r = 56 + (nb * 2 + hh) * 4
            a(f"v_mov_b32 v{r}, v{D+nb*4+2*hh}")
            a(f"v_mov_b32 v{r+1}, v7")
            a(f"v_mov_b32 v{r+2}, v{D+nb*4+2*hh+1}")
            a(f"v_mov_b32 v{r+3}, v7")
    a("v_cmp_gt_u32 vcc, 4, v3")
    a("s_and_saveexec_b64 s[86:87], vcc")
    for nb in range(4):
        for hh in range(2):
            r = 56 + (nb * 2 + hh) * 4
            a(f"buffer_store_dwordx4 v[{r}:{r+3}], v6, {S(RWS)}, s9 offen offset:{nb*128 + hh*16} sc1")
    a("s_mov_b64 exec, s[86:87]")
    a.label("L_pissue")
    Q, O, KF, VF, Sr = 32, 48, 80, 96, 112
    M, Lr, T0, T1, AL, NM, P = 116, 117, 118, 119, 120, 121, 122
    def XK(e): return 128 + 32 * e
    def XV(e): return 128 + 32 * e + 16
    def frag_reads(slot, kf, vf):
        for s in range(4):
            a(f"ds_read_b128 v[{kf+4*s}:{kf+4*s+3}], v{RK+s} offset:{slot*8192}")
        for t in range(8):
            a(f"ds_read_b64_tr_b16 v[{vf+2*t}:{vf+2*t+1}], v{RV+t} offset:{slot*8192+4096}")
    def poll_issue():
        a(f"buffer_load_dwordx4 v[{VP}:{VP+3}], v{VQA}, {S(RWS)}, s88 offen sc1")
        a(f"buffer_load_dwordx4 v[{VP+4}:{VP+7}], v{VQA}, {S(RWS)}, s88 offen offset:16 sc1")
    def poll_check():
        a(f"v_add_u32 v{VP+8}, 1, v{VEP}")
        a(f"v_xor_b32 v{VP+9}, v{VP+1}, v{VP+8}")
        for r in (3, 5, 7):
            a(f"v_xor_b32 v6, v{VP+r}, v{VP+8}")
            a(f"v_or_b32 v{VP+9}, v{VP+9}, v6")
        a(f"v_cmp_eq_u32 vcc, 0, v{VP+9}")
        a("s_cmp_eq_u64 vcc, exec")
    issue(0)
    issue(1)
    misc_issue()
    for i in range(32): a(f"v_mov_b32 v{O+i}, 0")
    a(f"v_mov_b32 v{M}, {f2h(-3.0e38)}")
    a(f"v_mov_b32 v{Lr}, 0")
    POLLAT = opts.get("pollat", 0)
    outstanding_after = []
    queue = [["u0", 8], ["u1", 8], ["misc", 4 if opts.get("touch0") else 2]]
    def wait_for(name):
        idx = [i for i, q in enumerate(queue) if q[0] == name][0]
        n = sum(q[1] for q in queue[idx + 1:])
        a(f"s_waitcnt vmcnt({n})")
        del queue[:idx + 1]
    for e in range(E):
        wait_for(f"u{e}")
        frag_reads(e & 1, XK(e), XV(e))
        a("s_waitcnt lgkmcnt(0)")
        issue(e & 1); queue.append([f"u{e+2}", 8])
        if e == POLLAT:
            poll_issue(); queue.append(["poll", 2])
    wait_for("poll")
    rem_after_poll = list(map(list, queue))
    a("s_cmp_lg_u32 s3, 0")
    a("s_cbranch_scc1 L_qbar")
    a("s_mov_b32 s14, 0")
    poll_check()
    a("s_cbranch_scc1 L_qgot")
    if opts.get("noq"): a("s_branch L_qgot")
    a.label("L_qpoll")
    a(f"s_sleep {PSLEEP}")
    poll_issue()
    a("s_waitcnt vmcnt(0)")
    poll_check()
    a("s_cbranch_scc1 L_qgot")
    a("s_add_u32 s14, s14, 1")
    a(f"s_cmp_lt_u32 s14, {SPIN_MAX}")
    a("s_cbranch_scc1 L_qpoll")
    a.label("L_qgot")
    a(f"v_mov_b32 v{VP+1}, v{VP+2}")
    a(f"v_mov_b32 v{VP+2}, v{VP+4}")
    a(f"v_mov_b32 v{VP+3}, v{VP+6}")
    a(f"v_add_u32 v6, {L_Q}, v{VL16}")
    a(f"ds_write_b128 v6, v[{VP}:{VP+3}]")
    a("s_waitcnt lgkmcnt(0)")
    a.label("L_qbar")
    a("v_lshlrev_b32 v6, 2, v1")
    a(f"v_add_u32 v6, {L_SYNC}, v6")
    a("s_mov_b64 exec, 0xff")
    a(f"ds_write_b32 v6, v{VZ}")
    a("s_mov_b64 exec, -1")
    a("s_waitcnt lgkmcnt(0)")
    a("v_and_b32 v6, 3, v1")
    a("v_lshlrev_b32 v6, 8, v6")
    a("v_lshl_add_u32 v6, v2, 4, v6")
    a(f"v_add_u32 v6, {L_Q}, v6")
    stamp(1)
    a("s_barrier")
    stamp(2)
    for s in range(4):
        a(f"ds_read_b128 v[{Q+4*s}:{Q+4*s+3}], v6 offset:{s*64}")
    def qk(kf):
        for s in range(4):
            c = "0" if s == 0 else f"v[{Sr}:{Sr+3}]"
            a(f"v_mfma_f32_16x16x32_bf16 v[{Sr}:{Sr+3}], v[{kf+4*s}:{kf+4*s+3}], v[{Q+4*s}:{Q+4*s+3}], {c}")
    def soft_pv(vf):
        a(f"v_max3_f32 v{T0}, v{Sr}, v{Sr+1}, v{Sr+2}")
        a(f"v_max_f32 v{T0}, v{T0}, v{Sr+3}")
        xrow_reduce(a, T0, T1, "v_max_f32")
        a(f"v_max_f32 v{T0}, v{T0}, v{M}")
        a(f"v_sub_f32 v{AL}, v{M}, v{T0}")
        a(f"v_mul_f32 v{AL}, s13, v{AL}")
        a(f"v_exp_f32 v{AL}, v{AL}")
        a(f"v_mov_b32 v{M}, v{T0}")
        a(f"v_mul_f32 v{NM}, s13, v{T0}")
        for r in range(4):
            a(f"v_fma_f32 v{Sr+r}, v{Sr+r}, s13, -v{NM}")
        for r in range(4):
            a(f"v_exp_f32 v{Sr+r}, v{Sr+r}")
        a(f"v_add_f32 v{T0}, v{Sr}, v{Sr+1}")
        a(f"v_add_f32 v{T1}, v{Sr+2}, v{Sr+3}")
        a(f"v_add_f32 v{T0}, v{T0}, v{T1}")
        a(f"v_fma_f32 v{Lr}, v{Lr}, v{AL}, v{T0}")
        a(f"v_cvt_pk_bf16_f32 v{P}, v{Sr}, v{Sr+1}")
        a(f"v_cvt_pk_bf16_f32 v{P+1}, v{Sr+2}, v{Sr+3}")
        for i in range(32): a(f"v_mul_f32 v{O+i}, v{O+i}, v{AL}")
        for t in range(8):
            a(f"v_mfma_f32_16x16x16_bf16 v[{O+4*t}:{O+4*t+3}], v[{vf+2*t}:{vf+2*t+1}], v[{P}:{P+1}], v[{O+4*t}:{O+4*t+3}]")
    a(f"s_sub_u32 s14, s99, {2 + E}")
    a("s_mov_b32 s12, 0")
    a("s_mov_b32 s101, 1")
    def unit(slot, first):
        a("s_cmp_eq_u32 s12, 0")
        a(f"s_cbranch_scc1 L_w8_{slot}")
        a("s_waitcnt vmcnt(0)")
        a.label(f"L_w8_{slot}")
        a("s_waitcnt vmcnt(8)")
        frag_reads(slot, KF, VF)
        a("s_waitcnt lgkmcnt(8)")
        qk(KF)
        a("s_waitcnt lgkmcnt(0)")
        a("s_mov_b32 s15, s12")
        a("s_cmp_eq_u32 s14, 0")
        a("s_cselect_b32 s12, 1, 0")
        a(f"s_cbranch_scc1 L_noiss_{slot}")
        a("s_sub_u32 s14, s14, 1")
        issue(slot)
        a.label(f"L_noiss_{slot}")
        soft_pv(VF)
        if first:
            a("s_cmp_eq_u32 s101, 0")
            a("s_cbranch_scc1 L_nox")
            a("s_mov_b32 s101, 0")
            for e in range(E):
                qk(XK(e))
                soft_pv(XV(e))
            a.label("L_nox")
        a("s_cmp_lg_u32 s15, 0")
        a("s_cbranch_scc1 L_loopend")
    fs = E & 1
    if fs == 1: a("s_branch L_u1")
    a.label("L_loop")
    unit(0, fs == 0)
    a.label("L_u1")
    unit(1, fs == 1)
    a("s_branch L_loop")
    a.label("L_loopend")
    stamp(3)
    a("s_cmp_eq_u32 s42, 0")
    a("s_cbranch_scc1 L_nomlp")
    a("s_cmp_ge_u32 s3, 4")
    a("s_cbranch_scc1 L_nomlp")
    uid = [0]
    VSY, VONE, VT = 118, 119, 120
    def lds_sync(off):
        uid[0] += 1
        a("s_waitcnt lgkmcnt(0)")
        a("s_mov_b64 exec, 1")
        a(f"ds_add_u32 v{VSY}, v{VONE} offset:{off}")
        a("s_mov_b64 exec, -1")
        a.label(f"L_ls{uid[0]}")
        a(f"ds_read_b32 v{VT}, v{VSY} offset:{off}")
        a("s_waitcnt lgkmcnt(0)")
        a(f"v_readfirstlane_b32 s11, v{VT}")
        a("s_cmp_lt_u32 s11, 4")
        a(f"s_cbranch_scc1 L_ls{uid[0]}")
    a(f"v_mov_b32 v{VSY}, {L_SYNC}")
    a(f"v_mov_b32 v{VONE}, 1")
    a("s_lshl_b32 s94, s3, 10")
    a("s_lshl_b32 s92, s4, 7")
    a(f"buffer_load_dwordx4 v[32:35], v{VL16}, {S(RX)}, s94 offen")
    a("v_lshlrev_b32 v7, 1, v1")
    a(f"buffer_load_ushort v36, v7, {S(RB)}, s92 offen")
    a("v_lshrrev_b32 v6, 3, v1")
    a("v_mul_u32_u24 v6, 3584, v6")
    a("v_and_b32 v7, 7, v1")
    a("v_lshl_add_u32 v6, v7, 4, v6")
    a(f"s_mul_i32 s9, s3, {128*3584}")
    a("s_add_u32 s9, s9, s92")
    for i in range(16):
        a(f"s_add_u32 m0, s10, {i*1024}")
        a(f"buffer_load_dwordx4 v6, {S(RW)}, s9 offen{WPOL} lds")
        if i < 15: a(f"s_add_u32 s9, s9, {8*3584}")
    a("s_waitcnt vmcnt(17)")
    X2, T2, PK2 = 80, 88, 96
    for i in range(4):
        a(f"v_lshlrev_b32 v{X2+2*i}, 16, v{32+i}")
        a(f"v_and_b32 v{X2+1+2*i}, 0xffff0000, v{32+i}")
    layernorm8(a, X2, T2, PK2)
    layernorm8(a, X2, T2, PK2)
    a(f"v_add_u32 v6, s94, v{VL16}")
    a(f"v_add_u32 v6, {L_Y}, v6")
    a(f"ds_write_b128 v6, v[{PK2}:{PK2+3}]")
    VB2, VA2, VR2 = 37, 38, 39
    a("v_and_b32 v7, 3, v1")
    a(f"v_lshlrev_b32 v{VB2}, 10, v7")
    a(f"v_lshl_add_u32 v{VB2}, v2, 3, v{VB2}")
    a("s_lshl_b32 s9, s3, 8")
    a(f"s_add_u32 s9, s9, {L_Y}")
    a(f"v_add_u32 v{VB2}, s9, v{VB2}")
    a(f"v_lshrrev_b32 v{VA2}, 2, v1")
    a(f"v_lshlrev_b32 v{VA2}, 7, v{VA2}")
    a(f"v_lshl_add_u32 v{VA2}, v7, 3, v{VA2}")
    a(f"v_add_u32 v{VA2}, s10, v{VA2}")
    a(f"v_lshlrev_b32 v{VR2}, 8, v3")
    a(f"v_lshl_add_u32 v{VR2}, v2, 4, v{VR2}")
    a("s_lshl_b32 s9, s3, 10")
    a(f"s_add_u32 s9, s9, {L_RED}")
    a(f"v_add_u32 v{VR2}, s9, v{VR2}")
    lds_sync(0)
    a("s_waitcnt vmcnt(0)")
    BF2, AF2, D3 = 80, 128, 96
    for ks in range(8):
        a(f"ds_read_b64 v[{BF2+2*ks}:{BF2+1+2*ks}], v{VB2} offset:{ks*32}")
    for half in range(2):
        for ks in range(4):
            for nb in range(4):
                r = AF2 + (ks * 4 + nb) * 2
                a(f"ds_read_b64_tr_b16 v[{r}:{r+1}], v{VA2} offset:{(half*4+ks)*2048 + nb*32}")
        a("s_waitcnt lgkmcnt(0)")
        for ks in range(4):
            for nb in range(4):
                r = AF2 + (ks * 4 + nb) * 2
                kk = half * 4 + ks
                c = "0" if kk == 0 else f"v[{D3+nb*4}:{D3+nb*4+3}]"
                a(f"v_mfma_f32_16x16x16_bf16 v[{D3+nb*4}:{D3+nb*4+3}], v[{r}:{r+1}], v[{BF2+2*kk}:{BF2+1+2*kk}], {c}")
    a("v_lshlrev_b32 v6, 10, v2")
    a("v_lshl_add_u32 v6, v3, 4, v6")
    a("s_lshl_b32 s9, s4, 16")
    a("s_lshl_b32 s11, s3, 8")
    a("s_add_u32 s9, s9, s11")
    for i in range(16):
        a(f"s_add_u32 m0, s10, {i*1024}")
        a(f"buffer_load_dwordx4 v6, {S(RW2)}, s9 offen{WPOL} lds")
        if i < 15: a("s_add_u32 s9, s9, 4096")
    a("v_cmp_gt_u32 vcc, 4, v3")
    a("s_and_saveexec_b64 s[86:87], vcc")
    for nb in range(4):
        a(f"ds_write_b128 v{VR2}, v[{D3+nb*4}:{D3+nb*4+3}] offset:{nb*64}")
    a("s_mov_b64 exec, s[86:87]")
    lds_sync(4)
    a("v_lshlrev_b32 v6, 2, v1")
    a("s_lshl_b32 s9, s3, 8")
    a(f"s_add_u32 s9, s9, {L_RED}")
    a("v_add_u32 v6, s9, v6")
    for w in range(4):
        a(f"ds_read_b32 v{80+w}, v6 offset:{w*1024}")
    a("s_waitcnt lgkmcnt(0)")
    for w in range(1, 4):
        a(f"v_add_f32 v80, v80, v{80+w}")
    bf16r(a, 80, 80)
    a("v_lshlrev_b32 v36, 16, v36")
    a("v_add_f32 v80, v80, v36")
    bf16r(a, 80, 80)
    a("v_mul_f32 v81, v80, v80")
    a(f"v_mul_f32 v81, {f2h(0.044715)}, v81")
    a("v_fma_f32 v81, v81, v80, v80")
    a(f"v_mul_f32 v81, {f2h(k1)}, v81")
    a("v_exp_f32 v81, v81")
    a("v_add_f32 v81, 1.0, v81")
    a("v_rcp_f32 v81, v81")
    a("v_mul_f32 v80, v80, v81")
    a("v_cvt_pk_bf16_f32 v81, v80, v80")
    a("v_lshlrev_b32 v6, 1, v1")
    a("s_lshl_b32 s9, s3, 7")
    a(f"s_add_u32 s9, s9, {L_ACT2}")
    a("v_add_u32 v6, s9, v6")
    a("ds_write_b16 v6, v81")
    lds_sync(8)
    a("v_and_b32 v7, 3, v1")
    a(f"v_lshlrev_b32 v{VB2}, 7, v7")
    a(f"v_lshl_add_u32 v{VB2}, v2, 3, v{VB2}")
    a(f"v_add_u32 v{VB2}, {L_ACT2}, v{VB2}")
    a(f"v_lshrrev_b32 v{VA2}, 2, v1")
    a(f"v_lshlrev_b32 v{VA2}, 8, v{VA2}")
    a(f"v_lshl_add_u32 v{VA2}, v7, 3, v{VA2}")
    a(f"v_add_u32 v{VA2}, s10, v{VA2}")
    a(f"v_add_u32 v40, 1, v{VEP}")
    a("v_lshlrev_b32 v6, 12, v3")
    a("v_lshl_add_u32 v6, v2, 5, v6")
    a("s_waitcnt vmcnt(0)")
    for ks in range(4):
        a(f"ds_read_b64 v[{BF2+2*ks}:{BF2+1+2*ks}], v{VB2} offset:{ks*32}")
    for half in range(2):
        for ks in range(4):
            for nb in range(4):
                r = AF2 + (ks * 4 + nb) * 2
                a(f"ds_read_b64_tr_b16 v[{r}:{r+1}], v{VA2} offset:{ks*4096 + (half*4+nb)*32}")
        a("s_waitcnt lgkmcnt(0)")
        for ks in range(4):
            for nb in range(4):
                r = AF2 + (ks * 4 + nb) * 2
                d = D3 + nb * 4
                c = "0" if ks == 0 else f"v[{d}:{d+3}]"
                a(f"v_mfma_f32_16x16x16_bf16 v[{d}:{d+3}], v[{r}:{r+1}], v[{BF2+2*ks}:{BF2+1+2*ks}], {c}")
        a("s_lshl_b32 s9, s4, 14")
        a("s_lshl_b32 s11, s3, 10")
        a("s_add_u32 s9, s9, s11")
        a(f"s_add_u32 s9, s9, {WS_ZP2 + half*512}")
        for nb in range(4):
            for hh in range(2):
                r = AF2 + (nb * 2 + hh) * 4
                a(f"v_mov_b32 v{r}, v{D3+nb*4+2*hh}")
                a(f"v_mov_b32 v{r+1}, v40")
                a(f"v_mov_b32 v{r+2}, v{D3+nb*4+2*hh+1}")
                a(f"v_mov_b32 v{r+3}, v40")
        a("v_cmp_gt_u32 vcc, 4, v3")
        a("s_and_saveexec_b64 s[86:87], vcc")
        for nb in range(4):
            for hh in range(2):
                r = AF2 + (nb * 2 + hh) * 4
                a(f"buffer_store_dwordx4 v[{r}:{r+3}], v6, {S(RWS)}, s9 offen offset:{nb*128 + hh*16} sc1")
        a("s_mov_b64 exec, s[86:87]")
        if half == 0: a("s_waitcnt vmcnt(0)")
    a.label("L_nomlp")
    if opts.get("touch", 1):
        a("s_cmp_ge_u32 s3, 4")
        a("s_cbranch_scc1 L_notouch")
        a(f"v_mov_b32 v80, v{VEP}")
        a(f"v_mov_b32 v81, v{VEP}")
        a(f"v_mov_b32 v82, v{VEP}")
        a(f"v_mov_b32 v83, v{VEP}")
        a(f"s_add_u32 s9, s84, {16*PSLOT}")
        a(f"buffer_store_dwordx2 v[80:81], v{VI0}, {S(RWS)}, s84 offen sc1")
        a(f"buffer_store_dwordx2 v[80:81], v{VI0}, {S(RWS)}, s9 offen sc1")
        a(f"buffer_store_dwordx4 v[80:83], v{VI1}, {S(RWS)}, s84 offen sc1")
        a(f"buffer_store_dwordx4 v[80:83], v{VI1}, {S(RWS)}, s9 offen sc1")
        a(f"v_lshlrev_b32 v84, 1, v{VI2}")
        a(f"buffer_store_dwordx2 v[80:81], v84, {S(RWS)}, s85 offen sc1")
        a("s_waitcnt vmcnt(0)")
        a.label("L_notouch")
    xrow_reduce(a, Lr, T1, "v_add_f32")
    a("v_lshlrev_b32 v6, 9, v3")
    a("v_lshl_add_u32 v6, v2, 4, v6")
    a("v_add_u32 v6, s10, v6")
    a("v_lshlrev_b32 v7, 3, v3")
    a("v_add_u32 v7, s10, v7")
    a("v_cmp_gt_u32 vcc, 4, v3")
    a("s_and_saveexec_b64 s[86:87], vcc")
    for t in range(8):
        a(f"ds_write_b128 v6, v[{O+4*t}:{O+4*t+3}] offset:{t*64}")
    a(f"ds_write_b64 v7, v[{M}:{M+1}] offset:2048")
    a("s_mov_b64 exec, s[86:87]")
    a("v_lshrrev_b32 v6, 7, v0")
    a("v_and_b32 v7, 127, v0")
    a("v_lshlrev_b32 v8, 9, v6")
    a("v_lshl_add_u32 v8, v7, 2, v8")
    a("v_lshlrev_b32 v9, 3, v6")
    a("v_add_u32 v10, 0x10000, v8")
    a("v_add_u32 v11, 0x10000, v9")
    a("s_waitcnt lgkmcnt(0)")
    a("s_barrier")
    stamp(4)
    if opts.get("x_notail"): a("s_branch L_end")
    for w in range(8):
        a(f"ds_read_b32 v{32+w}, v{8 if w < 4 else 10} offset:{(w&3)*16384}")
        a(f"ds_read_b64 v[{40+2*w}:{41+2*w}], v{9 if w < 4 else 11} offset:{(w&3)*16384+2048}")
    a("s_waitcnt lgkmcnt(0)")
    a("v_max3_f32 v12, v40, v42, v44")
    a("v_max3_f32 v12, v12, v46, v48")
    a("v_max3_f32 v12, v12, v50, v52")
    a("v_max_f32 v12, v12, v54")
    a("v_mov_b32 v14, 0")
    a("v_mov_b32 v13, 0")
    for w in range(8):
        a(f"v_sub_f32 v15, v{40+2*w}, v12")
        a("v_mul_f32 v15, s13, v15")
        a("v_exp_f32 v15, v15")
        a(f"v_fmac_f32 v14, v15, v{32+w}")
        a(f"v_fmac_f32 v13, v15, v{41+2*w}")
    VN = 60
    a(f"v_add_u32 v{VN}, 1, v{VEP}")
    a(f"v_mov_b32 v15, v{VN}")
    a(f"buffer_store_dwordx2 v[14:15], v{VI0}, {S(RWS)}, s84 offen sc1")
    a("v_mul_f32 v56, s13, v12")
    a(f"v_mov_b32 v57, v{VN}")
    a("v_mov_b32 v58, v13")
    a(f"v_mov_b32 v59, v{VN}")
    a("v_cmp_eq_u32 vcc, 0, v7")
    a("s_and_saveexec_b64 s[86:87], vcc")
    a(f"buffer_store_dwordx4 v[56:59], v{VI1}, {S(RWS)}, s84 offen sc1")
    a("s_mov_b64 exec, s[86:87]")
    a(f"s_mov_b32 s9, {256*PSLOT}")
    a("v_mul_lo_u32 v10, v6, s9")
    a("v_lshl_add_u32 v11, v7, 3, v10")
    a("v_add_u32 v10, 1024, v10")
    a(f"s_mul_i32 s9, s4, {8*PSLOT}")
    a(f"s_add_u32 s9, s9, {WS_PART2}")
    a(f"s_add_u32 s15, s9, {4*PSLOT}")
    a("v_lshlrev_b32 v15, 1, v0")
    a(f"v_add_u32 v15, {L_OACT}, v15")
    a("v_and_b32 v14, 3, v1")
    a("v_lshlrev_b32 v16, 8, v14")
    a("v_lshl_add_u32 v16, v2, 3, v16")
    a(f"v_add_u32 v16, {L_OACT}, v16")
    a("v_lshrrev_b32 v17, 2, v1")
    a("v_lshlrev_b32 v17, 7, v17")
    a("v_lshl_add_u32 v17, v14, 3, v17")
    a("s_and_b32 s11, s3, 3")
    a("s_lshl_b32 s11, s11, 5")
    a(f"s_add_u32 s11, s11, {L_WO}")
    a("v_add_u32 v17, s11, v17")
    WF = 128
    for ks in range(8):
        a(f"ds_read_b64_tr_b16 v[{WF+2*ks}:{WF+1+2*ks}], v17 offset:{ks*2048}")
    a("v_lshlrev_b32 v18, 9, v3")
    a("v_lshl_add_u32 v18, v2, 4, v18")
    a("s_and_b32 s11, s3, 3")
    a("s_lshl_b32 s11, s11, 7")
    a("v_add_u32 v18, s11, v18")
    ZR = 144
    a("s_cmp_lt_u32 s2, 224")
    a("s_cbranch_scc1 L_s3pre_done")
    a("s_and_b32 s6, s4, 3")
    a("v_lshlrev_b32 v5, 3, v1")
    a("v_lshlrev_b32 v6, 1, v1")
    a("s_lshl_b32 s92, s3, 14")
    a("s_lshl_b32 s11, s6, 12")
    a("s_add_u32 s92, s92, s11")
    a("s_lshl_b32 s11, s5, 9")
    a("s_add_u32 s92, s92, s11")
    a(f"s_add_u32 s92, s92, {WS_ZP2}")
    a("s_add_u32 s88, s92, 131072")
    a("s_add_u32 s89, s92, 262144")
    a("s_add_u32 s90, s92, 393216")
    a("s_cmp_lt_u32 s3, 4")
    a("s_cselect_b32 s90, s90, s92")
    srd(a, RB, P_B2, 1024)
    a("s_lshl_b32 s11, s5, 7")
    a(f"buffer_load_ushort v{ZR+8}, v6, {S(RB)}, s11 offen")
    a("s_lshl_b32 s94, s6, 10")
    a("s_add_u32 s94, s94, s11")
    a(f"buffer_load_ushort v{ZR+9}, v6, {S(RX)}, s94 offen")
    for i, so in enumerate(("s92", "s88", "s89", "s90")):
        a(f"buffer_load_dwordx2 v[{ZR+2*i}:{ZR+1+2*i}], v5, {S(RWS)}, {so} offen sc1")
    a("s_lshl_b32 s93, s5, 16")
    a("s_lshl_b32 s11, s3, 13")
    a("s_add_u32 s93, s93, s11")
    a("s_lshl_b32 s11, s6, 9")
    a("s_add_u32 s93, s93, s11")
    a(f"s_add_u32 s93, s93, {WS_SP2}")
    a("s_add_u32 s91, s93, 4096")
    a("v_lshlrev_b32 v4, 7, v2")
    a("v_bfe_u32 v7, v1, 1, 1")
    a("v_lshl_add_u32 v4, v7, 6, v4")
    a("v_bfe_u32 v7, v1, 2, 2")
    a("v_lshl_add_u32 v4, v7, 4, v4")
    a("v_and_b32 v7, 1, v1")
    a("v_lshl_add_u32 v4, v7, 3, v4")
    a.label("L_s3pre_done")
    stamp(5)
    PO, PM = 72, 88
    LITE = opts.get("lite", 1)
    a("v_and_b32 v21, 7, v1")
    a(f"v_mul_u32_u24 v21, {PSLOT}, v21")
    a("v_add_u32 v21, v21, v10")
    a("s_mov_b32 s14, 0")
    a("s_mov_b32 s12, 0")
    a.label("L_s2poll")
    for sp in range(8):
        so = "s9" if sp < 4 else "s15"
        a(f"s_bitcmp1_b32 s12, {sp}")
        a(f"s_cbranch_scc1 L_s2sk{sp}")
        a(f"buffer_load_dwordx4 v[{PM+4*sp}:{PM+4*sp+3}], v10, {S(RWS)}, {so} offen offset:{(sp&3)*PSLOT} sc1")
        a(f"buffer_load_dwordx2 v[{PO+2*sp}:{PO+2*sp+1}], v11, {S(RWS)}, {so} offen offset:{(sp&3)*PSLOT} sc1")
        a.raw(f"L_s2sk{sp}:")
    a("s_waitcnt vmcnt(0)")
    for sp in range(8):
        a(f"v_xor_b32 v12, v{PM+4*sp+1}, v{VN}")
        a(f"v_xor_b32 v13, v{PM+4*sp+3}, v{VN}")
        a(f"v_xor_b32 v14, v{PO+2*sp+1}, v{VN}")
        a("v_or3_b32 v12, v12, v13, v14")
        a("v_cmp_eq_u32 vcc, 0, v12")
        a("s_cmp_eq_u64 vcc, exec")
        a(f"s_cselect_b32 s11, {1 << sp}, 0")
        a("s_or_b32 s12, s12, s11")
    a("s_cmp_eq_u32 s12, 0xff")
    a("s_cbranch_scc1 L_s2go")
    a("s_add_u32 s14, s14, 1")
    a(f"s_cmp_ge_u32 s14, {SPIN_MAX}")
    a("s_cbranch_scc1 L_s2go")
    a("s_bcnt1_i32_b32 s11, s12")
    a(f"s_cmp_lt_u32 s11, {8 - LITE}")
    a("s_cbranch_scc1 L_s2lite")
    a(f"s_sleep {opts.get('s2sleep2', 1)}")
    a("s_branch L_s2poll")
    a.label("L_s2lite")
    a("s_xor_b32 s11, s12, 0xff")
    a("s_mov_b32 exec_lo, s11")
    a("s_mov_b32 exec_hi, 0")
    a.label("L_s2pre")
    a(f"s_sleep {opts.get('s2sleep', 8)}")
    a(f"buffer_load_dwordx2 v[24:25], v21, {S(RWS)}, s9 offen sc1")
    a("s_waitcnt vmcnt(0)")
    a(f"v_cmp_ne_u32 vcc, v25, v{VN}")
    a("s_and_b64 exec, exec, vcc")
    a("s_bcnt1_i32_b32 s11, exec_lo")
    a(f"s_cmp_le_u32 s11, {LITE}")
    a("s_cbranch_scc1 L_s2pre_done")
    a("s_add_u32 s14, s14, 1")
    a(f"s_cmp_lt_u32 s14, {SPIN_MAX}")
    a("s_cbranch_scc1 L_s2pre")
    a.label("L_s2pre_done")
    a("s_mov_b64 exec, -1")
    a("s_branch L_s2poll")
    a.label("L_s2go")
    stamp(6)
    a(f"v_max3_f32 v12, v{PM}, v{PM+4}, v{PM+8}")
    a(f"v_max3_f32 v12, v12, v{PM+12}, v{PM+16}")
    a(f"v_max3_f32 v12, v12, v{PM+20}, v{PM+24}")
    a(f"v_max_f32 v12, v12, v{PM+28}")
    a("v_mov_b32 v13, 0")
    a("v_mov_b32 v14, 0")
    for sp in range(8):
        a(f"v_sub_f32 v{40+sp}, v{PM+4*sp}, v12")
        a(f"v_exp_f32 v{40+sp}, v{40+sp}")
    for sp in range(8):
        a(f"v_fmac_f32 v13, v{40+sp}, v{PO+2*sp}")
        a(f"v_fmac_f32 v14, v{40+sp}, v{PM+4*sp+2}")
    a("v_rcp_f32 v14, v14")
    a("v_mul_f32 v13, v13, v14")
    a("v_cvt_pk_bf16_f32 v13, v13, v13")
    a("ds_write_b16 v15, v13")
    a("s_waitcnt lgkmcnt(0)")
    a("s_barrier")
    a("s_cmp_ge_u32 s3, 4")
    a("s_cbranch_scc1 L_s3")
    for ks in range(8):
        a(f"ds_read_b64 v[{72+2*ks}:{73+2*ks}], v16 offset:{ks*32}")
    for ks in range(8):
        a(f"s_waitcnt lgkmcnt({7-ks})")
        c = "0" if ks == 0 else "v[32:35]"
        a(f"v_mfma_f32_16x16x16_bf16 v[32:35], v[{WF+2*ks}:{WF+1+2*ks}], v[{72+2*ks}:{73+2*ks}], {c}")
    a(f"v_mov_b32 v41, v{VN}")
    a(f"v_mov_b32 v43, v{VN}")
    a(f"v_mov_b32 v45, v{VN}")
    a(f"v_mov_b32 v47, v{VN}")
    a("v_cmp_gt_u32 vcc, 4, v3")
    a("v_mov_b32 v40, v32")
    a("v_mov_b32 v42, v33")
    a("v_mov_b32 v44, v34")
    a("v_mov_b32 v46, v35")
    a("s_and_saveexec_b64 s[86:87], vcc")
    a(f"buffer_store_dwordx4 v[40:43], v18, {S(RWS)}, s85 offen sc1")
    a(f"buffer_store_dwordx4 v[44:47], v18, {S(RWS)}, s85 offen offset:64 sc1")
    a("s_mov_b64 exec, s[86:87]")
    a.label("L_s3")
    stamp(7)
    a("s_cmp_lt_u32 s2, 224")
    a("s_cbranch_scc1 L_end")
    a("s_mov_b32 s14, 0")
    a("s_branch L_s3poll")
    a.label("L_s3zpoll")
    for i, so in enumerate(("s92", "s88", "s89", "s90")):
        a(f"buffer_load_dwordx2 v[{ZR+2*i}:{ZR+1+2*i}], v5, {S(RWS)}, {so} offen sc1")
    a.label("L_s3poll")
    for i in range(4):
        so = "s93" if i < 2 else "s91"
        a(f"buffer_load_dwordx2 v[{72+2*i}:{73+2*i}], v4, {S(RWS)}, {so} offen offset:{(i&1)*2048} sc1")
    a("s_waitcnt vmcnt(0)")
    a("s_add_u32 s14, s14, 1")
    a(f"s_cmp_ge_u32 s14, {SPIN_MAX}")
    a("s_cbranch_scc1 L_s3go")
    a(f"v_xor_b32 v12, v{ZR+1}, v{VN}")
    for r in range(ZR + 3, ZR + 8, 2):
        a(f"v_xor_b32 v13, v{r}, v{VN}")
        a("v_or_b32 v12, v12, v13")
    a("v_cmp_eq_u32 vcc, 0, v12")
    a("s_cmp_eq_u64 vcc, exec")
    a("s_cbranch_scc0 L_s3zpoll")
    a(f"v_xor_b32 v12, v73, v{VN}")
    for r in range(75, 80, 2):
        a(f"v_xor_b32 v13, v{r}, v{VN}")
        a("v_or_b32 v12, v12, v13")
    a("v_cmp_eq_u32 vcc, 0, v12")
    a("s_cmp_eq_u64 vcc, exec")
    a("s_cbranch_scc1 L_s3go")
    if opts.get("s3sleep", 1): a(f"s_sleep {opts.get('s3sleep', 1)}")
    a("s_branch L_s3poll")
    a.label("L_s3go")
    stamp(8)
    a("v_add_f32 v32, v72, v74")
    a("v_add_f32 v34, v76, v78")
    a("v_add_f32 v32, v32, v34")
    a(f"v_add_f32 v33, v{ZR}, v{ZR+2}")
    a(f"v_add_f32 v33, v33, v{ZR+4}")
    a("s_cmp_lt_u32 s3, 4")
    a("s_cbranch_scc0 L_s3noz")
    a(f"v_add_f32 v33, v33, v{ZR+6}")
    a.label("L_s3noz")
    a("v_lshlrev_b32 v7, 3, v1")
    a("s_lshl_b32 s9, s3, 9")
    a(f"s_add_u32 s9, s9, {L_S3}")
    a("v_add_u32 v8, s9, v7")
    a("ds_write_b64 v8, v[32:33]")
    a("s_waitcnt lgkmcnt(0)")
    a("s_barrier")
    a("s_cmp_lg_u32 s3, 0")
    a("s_cbranch_scc1 L_end")
    a(f"v_add_u32 v8, {L_S3}, v7")
    for w in range(8):
        a(f"ds_read_b64 v[{16+2*w}:{17+2*w}], v8 offset:{w*512}")
    a("s_waitcnt lgkmcnt(0)")
    for w in range(1, 8):
        a(f"v_add_f32 v16, v16, v{16+2*w}")
        a(f"v_add_f32 v17, v17, v{17+2*w}")
    bf16r(a, 16, 16)
    bf16r(a, 17, 17)
    a(f"v_lshlrev_b32 v44, 16, v{ZR+8}")
    a(f"v_lshlrev_b32 v45, 16, v{ZR+9}")
    a("v_add_f32 v17, v17, v44")
    bf16r(a, 17, 17)
    a(f"v_mul_f32 v10, {f2h(-LOG2E)}, v17")
    a("v_exp_f32 v10, v10")
    a("v_add_f32 v10, 1.0, v10")
    a("v_rcp_f32 v10, v10")
    a("v_mul_f32 v17, v17, v10")
    bf16r(a, 17, 17)
    a("v_mul_f32 v16, v16, v17")
    bf16r(a, 16, 16)
    a("v_add_f32 v16, v16, v45")
    a("v_cvt_pk_bf16_f32 v16, v16, v16")
    a(f"buffer_store_short v16, v6, {S(ROUT)}, s94 offen")
    a("s_cmp_lg_u32 s2, 255")
    a("s_cbranch_scc1 L_end")
    a("v_mov_b32 v17, 1")
    a("v_mov_b32 v18, 0")
    a(f"s_mov_b32 s9, {WS_EPOCH}")
    a("s_mov_b64 exec, 1")
    a(f"buffer_atomic_add v17, v18, {S(RWS)}, s9 offen")
    a("s_mov_b64 exec, -1")
    a.label("L_end")
    if STAMP:
        stamp(9)
        a("s_lshl_b32 s9, s2, 10")
        a("s_lshl_b32 s11, s3, 6")
        a("s_add_u32 s9, s9, s11")
        a(f"s_add_u32 s9, s9, {WS_TS}")
        a("v_lshlrev_b32 v6, 2, v1")
        a("v_cmp_gt_u32 vcc, 16, v1")
        a("s_and_saveexec_b64 s[86:87], vcc")
        a(f"buffer_store_dword v{VST}, v6, {S(RWS)}, s9 offen")
    a.label("L_exit")
    a("s_endpgm")
    hdr = f"""; @launch grid=(256,1,1) block=(512,1,1) lds=163840
.amdgcn_target "amdgcn-amd-amdhsa--gfx950"
.text
"""
    return hdr + kernel_begin(KN) + a.text() + '.section .rodata,"a"\n.p2align 6\n' + kd(KN, NV)

if __name__ == "__main__":
    import json
    out = sys.argv[1]
    opts = json.loads(sys.argv[2]) if len(sys.argv) > 2 else {}
    open(out, "w").write(gen(opts))
```

```python
import struct, math, sys
from asmdsl import Asm
from gen_v1 import *

KN = NAME + "_kernel"
L_WO, L_XN, L_Y, L_RED = 131072, 147456, 151552, 155648
L_Q = L_XN
L_ACT2 = L_XN + 2048
L_OACT = L_XN + 3072
L_S3 = L_Y
L_SYNC = L_XN + 1536
SPIN_MAX = 1 << 20
WS_TS = 4 << 20
WS_EPOCH = 3 << 20
WS_QG = 2 << 20
PSLOT = 1152
WS_PART2 = 5 << 20
WS_SP2 = 7 << 20
WS_ZP2 = 8 << 20

def gen(opts=None):
    opts = opts or {}
    STAMP = opts.get("stamp", 0)
    PSLEEP = opts.get("psleep", 2)
    E = opts.get("E", 2)
    NV = 128 + 32 * E + 16
    VST = NV - 1
    VP = 128 + 32 * E
    POL = {"nt": " nt", "def": "", "sc1": " sc1", "sc0sc1": " sc0 sc1"}
    KPOL = POL[opts.get("kpol", "nt")]; VPOL = POL[opts.get("vpol", "nt")]; WPOL = POL[opts.get("wpol", "nt")]
    a = Asm()
    RK_, RV_, RWS, RW, RX, RW2, RWO, RDBG, RB, ROUT = 44, 48, 52, 56, 60, 64, 68, 72, 76, 80
    def S(r): return f"s[{r}:{r+3}]"
    def stamp(idx):
        if not STAMP: return
        a("s_memrealtime s[96:97]")
        a("s_waitcnt lgkmcnt(0)")
        a(f"v_writelane_b32 v{VST}, s96, {idx}")
    a("s_cmp_ge_u32 s2, 256")
    a("s_cbranch_scc1 L_exit")
    if STAMP: a(f"v_mov_b32 v{VST}, 0")
    stamp(0)
    load_ptrs(a)
    lane_decode(a)
    a("s_lshr_b32 s4, s2, 3")
    a("s_and_b32 s5, s2, 7")
    a("s_lshr_b32 s6, s4, 3")
    a("s_and_b32 s7, s4, 7")
    a("s_lshl_b32 s10, s3, 14")
    VK, VV, RK, RV, VW, VL16 = 8, 12, 14, 18, 26, 27
    VI0, VI1, VI2, VZ = 28, 29, 30, 31
    a(f"v_lshlrev_b32 v{VL16}, 4, v1")
    a("v_lshrrev_b32 v6, 3, v1")
    a("v_and_b32 v7, 7, v1")
    a("v_lshlrev_b32 v7, 4, v7")
    a(f"v_lshl_add_u32 v{VW}, v6, 10, v7")
    a(f"v_mov_b32 v{VZ}, 0")
    a("s_sub_u32 s100, s5, s4")
    a("s_and_b32 s100, s100, 7")
    a("s_cmp_lt_u32 s4, 28")
    a("s_cselect_b32 s98, 2, 0")
    a("s_cmp_eq_u32 s100, 2")
    a("s_cselect_b32 s98, s98, 0")
    a("s_cmp_lt_u32 s100, 2")
    a("s_cselect_b32 s98, 1, s98")
    if opts.get("norole"): a("s_mov_b32 s98, 0")
    a("s_cmp_eq_u32 s98, 2")
    a("s_cselect_b32 s42, 1, 0")
    a("s_cselect_b32 s98, 0, s98")
    a("s_lshl_b32 s89, s4, 1")
    a("s_add_u32 s89, s89, s100")
    a("s_mov_b32 s90, 3584")
    a(f"s_mov_b32 s91, {L_Y}")
    a(f"s_mov_b32 s{RW+2}, {512*1792*2}")
    a("s_cmp_eq_u32 s98, 1")
    a("s_cselect_b32 s89, s89, s4")
    a("s_cselect_b32 s90, 8192, s90")
    a(f"s_cselect_b32 s91, {L_XN}, s91")
    a(f"s_cselect_b32 s{RW+2}, {512*4096*2}, s{RW+2}")
    a(f"s_mov_b32 s{RW+3}, 0x20000")
    a("s_lshl_b32 s92, s89, 7")
    a("v_mul_lo_u32 v6, v6, s90")
    a("v_add_u32 v6, v6, v7")
    a("s_and_b32 s93, s3, 3")
    a("s_lshl_b32 s94, s93, 10")
    a("s_lshl_b32 s9, s3, 6")
    a("s_mul_i32 s9, s9, s90")
    a("s_add_u32 s9, s9, s92")
    a("s_lshl_b32 s11, s90, 3")
    a("v_lshlrev_b32 v7, 1, v1")
    a(f"s_mov_b32 s12, {WS_EPOCH}")
    a("s_waitcnt lgkmcnt(0)")
    a("s_cmp_eq_u32 s98, 1")
    a(f"s_cselect_b32 s{RW}, s{P_WQ}, s{P_W1}")
    a(f"s_cselect_b32 s{RW+1}, s{P_WQ+1}, s{P_W1+1}")
    srd(a, RX, P_X, 4096)
    srd(a, RWS, P_WS, WS_SIZE)
    srd(a, RB, P_B1, 1792 * 2)
    srd(a, RW2, P_W2, 1792 * 512 * 2)
    VEP = VP + 10
    a(f"buffer_load_dword v{VEP}, v{VZ}, {S(RWS)}, s12 offen sc1")
    a("s_cmp_eq_u32 s98, 0")
    a("s_cbranch_scc1 L_setup")
    a(f"buffer_load_dwordx4 v[48:51], v{VL16}, {S(RX)}, s94 offen")
    a(f"buffer_load_ushort v52, v7, {S(RB)}, s92 offen")
    for i in range(8):
        a(f"s_add_u32 m0, s10, {8192 + i*1024}")
        a(f"buffer_load_dwordx4 v6, {S(RW)}, s9 offen{WPOL} lds")
        if i < 7: a("s_add_u32 s9, s9, s11")
    a("s_cmp_eq_u32 s98, 1")
    a("s_cbranch_scc1 L_setup")
    a("s_lshl_b32 s9, s89, 16")
    a("s_lshl_b32 s11, s3, 7")
    a("s_add_u32 s9, s9, s11")
    for i in range(8):
        a(f"s_add_u32 m0, s10, {i*1024}")
        a(f"buffer_load_dwordx4 v{VW}, {S(RW2)}, s9 offen{WPOL} lds")
        if i < 7: a("s_add_u32 s9, s9, 8192")
    a.label("L_setup")
    stamp(10)
    srd(a, RK_, P_K, 128 << 20)
    srd(a, RV_, P_V, 128 << 20)
    srd(a, RWO, P_WO, 4096 * 512 * 2)
    srd(a, RDBG, P_DBG, 256)
    srd(a, ROUT, P_OUT, 4096)
    NQ, NM_ = opts.get("nq", 16), opts.get("nm", 16)
    def mk(counts):
        starts = [sum(counts[:i]) for i in range(8)]
        pk = lambda v: sum(x << (8 * i) for i, x in enumerate(v))
        return pk(counts), pk(starts)
    def spread(total, n):
        base = total // n; r = total - base * n
        return [base + (1 if i >= n - r else 0) for i in range(n)]
    cA, sA = mk([NQ, NQ, NM_] + spread(128 - 2 * NQ - NM_, 5))
    cB, sB = mk([NQ, NQ] + spread(128 - 2 * NQ, 6))
    a(f"s_mov_b32 s24, {cA & 0xffffffff}"); a(f"s_mov_b32 s25, {cA >> 32}")
    a(f"s_mov_b32 s26, {sA & 0xffffffff}"); a(f"s_mov_b32 s27, {sA >> 32}")
    a(f"s_mov_b32 s28, {cB & 0xffffffff}"); a(f"s_mov_b32 s29, {cB >> 32}")
    a(f"s_mov_b32 s30, {sB & 0xffffffff}"); a(f"s_mov_b32 s31, {sB >> 32}")
    a("s_cmp_lt_u32 s4, 28")
    a("s_cselect_b64 s[24:25], s[24:25], s[28:29]")
    a("s_cselect_b64 s[26:27], s[26:27], s[30:31]")
    a("s_lshl_b32 s9, s100, 3")
    a("s_lshr_b64 s[24:25], s[24:25], s9")
    a("s_lshr_b64 s[26:27], s[26:27], s9")
    a("s_and_b32 s99, s24, 0xff")
    a("s_and_b32 s9, s26, 0xff")
    a("s_lshl_b32 s8, s4, 22")
    a("s_lshl_b32 s9, s9, 15")
    a("s_add_u32 s8, s8, s9")
    a("s_lshl_b32 s9, s3, 12")
    a("s_add_u32 s8, s8, s9")
    a(f"s_mov_b32 s13, {f2h(CSCALE)}")
    a("v_xor_b32 v5, v3, v2")
    for i in range(4):
        a(f"v_xor_b32 v6, {4*i}, v5")
        a("v_lshlrev_b32 v6, 4, v6")
        a(f"v_lshl_add_u32 v{VK+i}, v2, 8, v6")
    for i in range(2):
        a(f"v_add_u32 v6, {4*i}, v2")
        a("v_lshlrev_b32 v6, 1, v6")
        a("v_xor_b32 v6, v6, v3")
        a("v_lshlrev_b32 v6, 4, v6")
        a(f"v_lshl_add_u32 v{VV+i}, v2, 8, v6")
    a("v_lshrrev_b32 v6, 7, v0")
    a(f"v_mul_u32_u24 v6, {8*PSLOT}, v6")
    a("v_and_b32 v7, 127, v0")
    a(f"v_lshl_add_u32 v{VI0}, v7, 3, v6")
    a(f"v_add_u32 v{VI1}, 1024, v6")
    a("v_and_b32 v7, 255, v0")
    a(f"v_lshlrev_b32 v{VI2}, 2, v7")
    a(f"s_mul_i32 s84, s4, {32*PSLOT}")
    a(f"s_mul_i32 s9, s5, {PSLOT}")
    a("s_add_u32 s84, s84, s9")
    a(f"s_add_u32 s84, s84, {WS_PART2}")
    a("s_lshl_b32 s85, s5, 5")
    a("s_add_u32 s85, s85, s4")
    a("s_lshl_b32 s85, s85, 11")
    a(f"s_add_u32 s85, s85, {WS_SP2}")
    for s in range(4):
        a(f"v_xor_b32 v6, {4*s}, v5")
        a("v_lshlrev_b32 v6, 4, v6")
        a("v_lshl_add_u32 v6, v3, 8, v6")
        a(f"v_add_u32 v{RK+s}, s10, v6")
    a("v_lshrrev_b32 v6, 2, v1")
    a("v_and_b32 v7, 7, v6")
    a("v_lshlrev_b32 v6, 8, v6")
    a("v_and_b32 v32, 3, v1")
    a("v_lshl_add_u32 v6, v32, 3, v6")
    a("v_add_u32 v6, s10, v6")
    for t in range(8):
        a(f"v_xor_b32 v33, {t}, v7")
        a(f"v_lshl_add_u32 v{RV+t}, v33, 5, v6")
    VQA = VP + 11
    a(f"v_lshlrev_b32 v{VQA}, 5, v1")
    a("s_lshl_b32 s88, s6, 14")
    a("s_lshl_b32 s11, s7, 11")
    a("s_add_u32 s88, s88, s11")
    a(f"s_add_u32 s88, s88, {WS_QG}")

    def issue(slot):
        a(f"s_add_u32 m0, s10, {slot*8192}")
        for i in range(4):
            a(f"buffer_load_dwordx4 v{VK+i}, {S(RK_)}, s8 offen offset:{i*1024}{KPOL} lds")
        a(f"s_add_u32 m0, s10, {slot*8192 + 4096}")
        for i in range(4):
            a(f"buffer_load_dwordx4 v{VV+(i&1)}, {S(RV_)}, s8 offen offset:{i*1024}{VPOL} lds")
        a("s_add_u32 s8, s8, 32768")
    def misc_issue():
        a("s_lshl_b32 s9, s4, 7")
        a("s_lshl_b32 s11, s3, 4")
        a("s_add_u32 s9, s9, s11")
        a("s_lshl_b32 s9, s9, 10")
        a("s_lshl_b32 s11, s5, 7")
        a("s_add_u32 s9, s9, s11")
        a("s_lshl_b32 s11, s3, 11")
        a(f"s_add_u32 m0, s11, {L_WO}")
        a(f"buffer_load_dwordx4 v{VW}, {S(RWO)}, s9 offen{WPOL} lds")
        a("s_add_u32 s9, s9, 8192")
        a(f"s_add_u32 m0, s11, {L_WO + 1024}")
        a(f"buffer_load_dwordx4 v{VW}, {S(RWO)}, s9 offen{WPOL} lds")

    a("s_cmp_eq_u32 s98, 0")
    a("s_cbranch_scc1 L_pissue")
    a("s_cmp_eq_u32 s98, 1")
    a("s_cbranch_scc1 L_now2")
    a("s_waitcnt vmcnt(17)")
    a("s_branch L_xin")
    a.label("L_now2")
    a("s_waitcnt vmcnt(9)")
    a.label("L_xin")
    stamp(11)
    X, T, PK = 56, 64, 72
    for i in range(4):
        a(f"v_lshlrev_b32 v{X+2*i}, 16, v{48+i}")
        a(f"v_and_b32 v{X+1+2*i}, 0xffff0000, v{48+i}")
    layernorm8(a, X, T, PK)
    a(f"v_add_u32 v6, s94, v{VL16}")
    a(f"v_add_u32 v6, {L_XN}, v6")
    VB, VA = 53, 54
    a(f"v_and_b32 v7, 3, v1")
    a(f"v_lshlrev_b32 v{VB}, 10, v7")
    a(f"v_lshl_add_u32 v{VB}, v2, 3, v{VB}")
    a("s_lshl_b32 s9, s3, 7")
    a("s_add_u32 s9, s9, s91")
    a(f"v_add_u32 v{VB}, s9, v{VB}")
    a(f"v_lshrrev_b32 v{VA}, 2, v1")
    a(f"v_lshlrev_b32 v{VA}, 7, v{VA}")
    a(f"v_lshl_add_u32 v{VA}, v7, 3, v{VA}")
    a(f"v_add_u32 v{VA}, s10, v{VA}")
    a("v_lshlrev_b32 v55, 8, v3")
    a("v_lshl_add_u32 v55, v2, 4, v55")
    a("s_lshl_b32 s9, s3, 10")
    a(f"s_add_u32 s9, s9, {L_RED}")
    a("v_add_u32 v55, s9, v55")
    a("s_cmp_eq_u32 s98, 1")
    a("s_cbranch_scc1 L_lnq")
    layernorm8(a, X, T, PK)
    a(f"ds_write_b128 v6, v[{PK}:{PK+3}] offset:{L_Y - L_XN}")
    a("s_waitcnt vmcnt(8) lgkmcnt(0)")
    a("s_branch L_p1")
    a.label("L_lnq")
    a(f"ds_write_b128 v6, v[{PK}:{PK+3}]")
    stamp(12)
    a("s_waitcnt vmcnt(0) lgkmcnt(0)")
    a.label("L_p1")
    stamp(13)
    a("s_barrier")
    stamp(14)
    BF, AF, D = 56, 64, 96
    def gemv_reads(base):
        for ks in range(4):
            a(f"ds_read_b64 v[{BF+2*ks}:{BF+1+2*ks}], v{VB} offset:{ks*32}")
        for ks in range(4):
            for nb in range(4):
                r = AF + (ks * 4 + nb) * 2
                a(f"ds_read_b64_tr_b16 v[{r}:{r+1}], v{VA} offset:{base + ks*2048 + nb*32}")
        a("s_waitcnt lgkmcnt(0)")
    def gemv_mfma():
        for ks in range(4):
            for nb in range(4):
                r = AF + (ks * 4 + nb) * 2
                c = "0" if ks == 0 else f"v[{D+nb*4}:{D+nb*4+3}]"
                a(f"v_mfma_f32_16x16x16_bf16 v[{D+nb*4}:{D+nb*4+3}], v[{r}:{r+1}], v[{BF+2*ks}:{BF+1+2*ks}], {c}")
    gemv_reads(8192)
    gemv_mfma()
    a("v_cmp_gt_u32 vcc, 4, v3")
    a("s_and_saveexec_b64 s[86:87], vcc")
    for nb in range(4):
        a(f"ds_write_b128 v55, v[{D+nb*4}:{D+nb*4+3}] offset:{nb*64}")
    a("s_mov_b64 exec, s[86:87]")
    a("s_waitcnt lgkmcnt(0)")
    a("s_barrier")
    stamp(15)
    a("s_cmp_eq_u32 s98, 1")
    a("s_cbranch_scc0 L_mlp2")
    a("s_cmp_ge_u32 s3, 2")
    a("s_cbranch_scc1 L_q_bar")
    a("v_lshlrev_b32 v6, 3, v1")
    a("s_lshl_b32 s9, s3, 9")
    a(f"s_add_u32 s9, s9, {L_RED}")
    a("v_add_u32 v6, s9, v6")
    for w in range(8):
        a(f"ds_read_b64 v[{56+2*w}:{57+2*w}], v6 offset:{w*1024}")
    a("v_and_b32 v7, 31, v1")
    a("v_lshlrev_b32 v7, 3, v7")
    a("v_lshrrev_b32 v53, 5, v1")
    a("v_lshl_add_u32 v7, v53, 14, v7")
    a("s_lshl_b32 s9, s89, 8")
    a("s_lshl_b32 s11, s3, 15")
    a("s_add_u32 s9, s9, s11")
    a(f"s_add_u32 s9, s9, {WS_QG}")
    a("s_waitcnt lgkmcnt(0)")
    for w in range(1, 8):
        a(f"v_add_f32 v56, v56, v{56+2*w}")
        a(f"v_add_f32 v57, v57, v{57+2*w}")
    a("v_cvt_pk_bf16_f32 v56, v56, v57")
    a(f"v_add_u32 v57, 1, v{VEP}")
    a(f"buffer_store_dwordx2 v[56:57], v7, {S(RWS)}, s9 offen sc1")
    a.label("L_q_bar")
    a("s_barrier")
    a("s_branch L_pissue")
    a.label("L_mlp2")
    a("v_lshlrev_b32 v6, 2, v1")
    a("s_lshl_b32 s9, s93, 8")
    a(f"s_add_u32 s9, s9, {L_RED}")
    a("v_add_u32 v6, s9, v6")
    for w in range(8):
        a(f"ds_read_b32 v{56+w}, v6 offset:{w*1024}")
    a("s_waitcnt lgkmcnt(0)")
    for w in range(1, 8):
        a(f"v_add_f32 v56, v56, v{56+w}")
    bf16r(a, 56, 56)
    a("v_lshlrev_b32 v52, 16, v52")
    a("v_add_f32 v56, v56, v52")
    bf16r(a, 56, 56)
    k1 = -2.0 * LOG2E * math.sqrt(2.0 / math.pi)
    a("v_mul_f32 v57, v56, v56")
    a(f"v_mul_f32 v57, {f2h(0.044715)}, v57")
    a("v_fma_f32 v57, v57, v56, v56")
    a(f"v_mul_f32 v57, {f2h(k1)}, v57")
    a("v_exp_f32 v57, v57")
    a("v_add_f32 v57, 1.0, v57")
    a("v_rcp_f32 v57, v57")
    a("v_mul_f32 v56, v56, v57")
    a("v_cvt_pk_bf16_f32 v57, v56, v56")
    a("v_lshlrev_b32 v6, 1, v1")
    a("s_lshl_b32 s9, s93, 7")
    a(f"s_add_u32 s9, s9, {L_ACT2}")
    a("v_add_u32 v6, s9, v6")
    a("ds_write_b16 v6, v57")
    a("s_waitcnt lgkmcnt(0)")
    a("s_barrier")
    a("v_and_b32 v7, 3, v1")
    a(f"v_lshlrev_b32 v{VB}, 7, v7")
    a(f"v_lshl_add_u32 v{VB}, v2, 3, v{VB}")
    a(f"v_add_u32 v{VB}, {L_ACT2}, v{VB}")
    a("s_waitcnt vmcnt(0)")
    gemv_reads(0)
    gemv_mfma()
    a("v_lshlrev_b32 v6, 12, v3")
    a("v_lshl_add_u32 v6, v2, 5, v6")
    a("s_lshl_b32 s9, s89, 14")
    a("s_lshl_b32 s11, s3, 9")
    a("s_add_u32 s9, s9, s11")
    a(f"s_add_u32 s9, s9, {WS_ZP2}")
    a(f"v_add_u32 v7, 1, v{VEP}")
    for nb in range(4):
        for hh in range(2):
            r = 56 + (nb * 2 + hh) * 4
            a(f"v_mov_b32 v{r}, v{D+nb*4+2*hh}")
            a(f"v_mov_b32 v{r+1}, v7")
            a(f"v_mov_b32 v{r+2}, v{D+nb*4+2*hh+1}")
            a(f"v_mov_b32 v{r+3}, v7")
    a("v_cmp_gt_u32 vcc, 4, v3")
    a("s_and_saveexec_b64 s[86:87], vcc")
    for nb in range(4):
        for hh in range(2):
            r = 56 + (nb * 2 + hh) * 4
            a(f"buffer_store_dwordx4 v[{r}:{r+3}], v6, {S(RWS)}, s9 offen offset:{nb*128 + hh*16} sc1")
    a("s_mov_b64 exec, s[86:87]")
    a.label("L_pissue")
    Q, O, KF, VF, Sr = 32, 48, 80, 96, 112
    M, Lr, T0, T1, AL, NM, P = 116, 117, 118, 119, 120, 121, 122
    def XK(e): return 128 + 32 * e
    def XV(e): return 128 + 32 * e + 16
    def frag_reads(slot, kf, vf):
        for s in range(4):
            a(f"ds_read_b128 v[{kf+4*s}:{kf+4*s+3}], v{RK+s} offset:{slot*8192}")
        for t in range(8):
            a(f"ds_read_b64_tr_b16 v[{vf+2*t}:{vf+2*t+1}], v{RV+t} offset:{slot*8192+4096}")
    def poll_issue():
        a(f"buffer_load_dwordx4 v[{VP}:{VP+3}], v{VQA}, {S(RWS)}, s88 offen sc1")
        a(f"buffer_load_dwordx4 v[{VP+4}:{VP+7}], v{VQA}, {S(RWS)}, s88 offen offset:16 sc1")
    def poll_check():
        a(f"v_add_u32 v{VP+8}, 1, v{VEP}")
        a(f"v_xor_b32 v{VP+9}, v{VP+1}, v{VP+8}")
        for r in (3, 5, 7):
            a(f"v_xor_b32 v6, v{VP+r}, v{VP+8}")
            a(f"v_or_b32 v{VP+9}, v{VP+9}, v6")
        a(f"v_cmp_eq_u32 vcc, 0, v{VP+9}")
        a("s_cmp_eq_u64 vcc, exec")
    issue(0)
    issue(1)
    misc_issue()
    for i in range(32): a(f"v_mov_b32 v{O+i}, 0")
    a(f"v_mov_b32 v{M}, {f2h(-3.0e38)}")
    a(f"v_mov_b32 v{Lr}, 0")
    POLLAT = opts.get("pollat", 0)
    outstanding_after = []
    queue = [["u0", 8], ["u1", 8], ["misc", 2]]
    def wait_for(name):
        idx = [i for i, q in enumerate(queue) if q[0] == name][0]
        n = sum(q[1] for q in queue[idx + 1:])
        a(f"s_waitcnt vmcnt({n})")
        del queue[:idx + 1]
    for e in range(E):
        wait_for(f"u{e}")
        frag_reads(e & 1, XK(e), XV(e))
        a("s_waitcnt lgkmcnt(0)")
        issue(e & 1); queue.append([f"u{e+2}", 8])
        if e == POLLAT:
            poll_issue(); queue.append(["poll", 2])
    wait_for("poll")
    rem_after_poll = list(map(list, queue))
    a("s_cmp_lg_u32 s3, 0")
    a("s_cbranch_scc1 L_qbar")
    a("s_mov_b32 s14, 0")
    poll_check()
    a("s_cbranch_scc1 L_qgot")
    if opts.get("noq"): a("s_branch L_qgot")
    a.label("L_qpoll")
    a(f"s_sleep {PSLEEP}")
    poll_issue()
    a("s_waitcnt vmcnt(0)")
    poll_check()
    a("s_cbranch_scc1 L_qgot")
    a("s_add_u32 s14, s14, 1")
    a(f"s_cmp_lt_u32 s14, {SPIN_MAX}")
    a("s_cbranch_scc1 L_qpoll")
    a.label("L_qgot")
    a(f"v_mov_b32 v{VP+1}, v{VP+2}")
    a(f"v_mov_b32 v{VP+2}, v{VP+4}")
    a(f"v_mov_b32 v{VP+3}, v{VP+6}")
    a(f"v_add_u32 v6, {L_Q}, v{VL16}")
    a(f"ds_write_b128 v6, v[{VP}:{VP+3}]")
    a("s_waitcnt lgkmcnt(0)")
    a.label("L_qbar")
    a("v_lshlrev_b32 v6, 2, v1")
    a(f"v_add_u32 v6, {L_SYNC}, v6")
    a("s_mov_b64 exec, 0xff")
    a(f"ds_write_b32 v6, v{VZ}")
    a("s_mov_b64 exec, -1")
    a("s_waitcnt lgkmcnt(0)")
    a("v_and_b32 v6, 3, v1")
    a("v_lshlrev_b32 v6, 8, v6")
    a("v_lshl_add_u32 v6, v2, 4, v6")
    a(f"v_add_u32 v6, {L_Q}, v6")
    stamp(1)
    a("s_barrier")
    stamp(2)
    for s in range(4):
        a(f"ds_read_b128 v[{Q+4*s}:{Q+4*s+3}], v6 offset:{s*64}")
    def qk(kf):
        for s in range(4):
            c = "0" if s == 0 else f"v[{Sr}:{Sr+3}]"
            a(f"v_mfma_f32_16x16x32_bf16 v[{Sr}:{Sr+3}], v[{kf+4*s}:{kf+4*s+3}], v[{Q+4*s}:{Q+4*s+3}], {c}")
    def soft_pv(vf):
        a(f"v_max3_f32 v{T0}, v{Sr}, v{Sr+1}, v{Sr+2}")
        a(f"v_max_f32 v{T0}, v{T0}, v{Sr+3}")
        xrow_reduce(a, T0, T1, "v_max_f32")
        a(f"v_max_f32 v{T0}, v{T0}, v{M}")
        a(f"v_sub_f32 v{AL}, v{M}, v{T0}")
        a(f"v_mul_f32 v{AL}, s13, v{AL}")
        a(f"v_exp_f32 v{AL}, v{AL}")
        a(f"v_mov_b32 v{M}, v{T0}")
        a(f"v_mul_f32 v{NM}, s13, v{T0}")
        for r in range(4):
            a(f"v_fma_f32 v{Sr+r}, v{Sr+r}, s13, -v{NM}")
        for r in range(4):
            a(f"v_exp_f32 v{Sr+r}, v{Sr+r}")
        a(f"v_add_f32 v{T0}, v{Sr}, v{Sr+1}")
        a(f"v_add_f32 v{T1}, v{Sr+2}, v{Sr+3}")
        a(f"v_add_f32 v{T0}, v{T0}, v{T1}")
        a(f"v_fma_f32 v{Lr}, v{Lr}, v{AL}, v{T0}")
        a(f"v_cvt_pk_bf16_f32 v{P}, v{Sr}, v{Sr+1}")
        a(f"v_cvt_pk_bf16_f32 v{P+1}, v{Sr+2}, v{Sr+3}")
        for i in range(32): a(f"v_mul_f32 v{O+i}, v{O+i}, v{AL}")
        for t in range(8):
            a(f"v_mfma_f32_16x16x16_bf16 v[{O+4*t}:{O+4*t+3}], v[{vf+2*t}:{vf+2*t+1}], v[{P}:{P+1}], v[{O+4*t}:{O+4*t+3}]")
    a(f"s_sub_u32 s14, s99, {2 + E}")
    a("s_mov_b32 s12, 0")
    a("s_mov_b32 s101, 1")
    def unit(slot, first):
        a("s_cmp_eq_u32 s12, 0")
        a(f"s_cbranch_scc1 L_w8_{slot}")
        a("s_waitcnt vmcnt(0)")
        a.label(f"L_w8_{slot}")
        a("s_waitcnt vmcnt(8)")
        frag_reads(slot, KF, VF)
        a("s_waitcnt lgkmcnt(8)")
        qk(KF)
        a("s_waitcnt lgkmcnt(0)")
        a("s_mov_b32 s15, s12")
        a("s_cmp_eq_u32 s14, 0")
        a("s_cselect_b32 s12, 1, 0")
        a(f"s_cbranch_scc1 L_noiss_{slot}")
        a("s_sub_u32 s14, s14, 1")
        issue(slot)
        a.label(f"L_noiss_{slot}")
        soft_pv(VF)
        if first:
            a("s_cmp_eq_u32 s101, 0")
            a("s_cbranch_scc1 L_nox")
            a("s_mov_b32 s101, 0")
            for e in range(E):
                qk(XK(e))
                soft_pv(XV(e))
            a.label("L_nox")
        a("s_cmp_lg_u32 s15, 0")
        a("s_cbranch_scc1 L_loopend")
    fs = E & 1
    if fs == 1: a("s_branch L_u1")
    a.label("L_loop")
    unit(0, fs == 0)
    a.label("L_u1")
    unit(1, fs == 1)
    a("s_branch L_loop")
    a.label("L_loopend")
    stamp(3)
    a("s_cmp_eq_u32 s42, 0")
    a("s_cbranch_scc1 L_nomlp")
    a("s_cmp_ge_u32 s3, 4")
    a("s_cbranch_scc1 L_nomlp")
    uid = [0]
    VSY, VONE, VT = 118, 119, 120
    def lds_sync(off):
        uid[0] += 1
        a("s_waitcnt lgkmcnt(0)")
        a("s_mov_b64 exec, 1")
        a(f"ds_add_u32 v{VSY}, v{VONE} offset:{off}")
        a("s_mov_b64 exec, -1")
        a.label(f"L_ls{uid[0]}")
        a(f"ds_read_b32 v{VT}, v{VSY} offset:{off}")
        a("s_waitcnt lgkmcnt(0)")
        a(f"v_readfirstlane_b32 s11, v{VT}")
        a("s_cmp_lt_u32 s11, 4")
        a(f"s_cbranch_scc1 L_ls{uid[0]}")
    a(f"v_mov_b32 v{VSY}, {L_SYNC}")
    a(f"v_mov_b32 v{VONE}, 1")
    a("s_lshl_b32 s94, s3, 10")
    a("s_lshl_b32 s92, s4, 7")
    a(f"buffer_load_dwordx4 v[32:35], v{VL16}, {S(RX)}, s94 offen")
    a("v_lshlrev_b32 v7, 1, v1")
    a(f"buffer_load_ushort v36, v7, {S(RB)}, s92 offen")
    a("v_lshrrev_b32 v6, 3, v1")
    a("v_mul_u32_u24 v6, 3584, v6")
    a("v_and_b32 v7, 7, v1")
    a("v_lshl_add_u32 v6, v7, 4, v6")
    a(f"s_mul_i32 s9, s3, {128*3584}")
    a("s_add_u32 s9, s9, s92")
    for i in range(16):
        a(f"s_add_u32 m0, s10, {i*1024}")
        a(f"buffer_load_dwordx4 v6, {S(RW)}, s9 offen{WPOL} lds")
        if i < 15: a(f"s_add_u32 s9, s9, {8*3584}")
    a("s_waitcnt vmcnt(17)")
    X2, T2, PK2 = 80, 88, 96
    for i in range(4):
        a(f"v_lshlrev_b32 v{X2+2*i}, 16, v{32+i}")
        a(f"v_and_b32 v{X2+1+2*i}, 0xffff0000, v{32+i}")
    layernorm8(a, X2, T2, PK2)
    layernorm8(a, X2, T2, PK2)
    a(f"v_add_u32 v6, s94, v{VL16}")
    a(f"v_add_u32 v6, {L_Y}, v6")
    a(f"ds_write_b128 v6, v[{PK2}:{PK2+3}]")
    VB2, VA2, VR2 = 37, 38, 39
    a("v_and_b32 v7, 3, v1")
    a(f"v_lshlrev_b32 v{VB2}, 10, v7")
    a(f"v_lshl_add_u32 v{VB2}, v2, 3, v{VB2}")
    a("s_lshl_b32 s9, s3, 8")
    a(f"s_add_u32 s9, s9, {L_Y}")
    a(f"v_add_u32 v{VB2}, s9, v{VB2}")
    a(f"v_lshrrev_b32 v{VA2}, 2, v1")
    a(f"v_lshlrev_b32 v{VA2}, 7, v{VA2}")
    a(f"v_lshl_add_u32 v{VA2}, v7, 3, v{VA2}")
    a(f"v_add_u32 v{VA2}, s10, v{VA2}")
    a(f"v_lshlrev_b32 v{VR2}, 8, v3")
    a(f"v_lshl_add_u32 v{VR2}, v2, 4, v{VR2}")
    a("s_lshl_b32 s9, s3, 10")
    a(f"s_add_u32 s9, s9, {L_RED}")
    a(f"v_add_u32 v{VR2}, s9, v{VR2}")
    lds_sync(0)
    a("s_waitcnt vmcnt(0)")
    BF2, AF2, D3 = 80, 128, 96
    for ks in range(8):
        a(f"ds_read_b64 v[{BF2+2*ks}:{BF2+1+2*ks}], v{VB2} offset:{ks*32}")
    for half in range(2):
        for ks in range(4):
            for nb in range(4):
                r = AF2 + (ks * 4 + nb) * 2
                a(f"ds_read_b64_tr_b16 v[{r}:{r+1}], v{VA2} offset:{(half*4+ks)*2048 + nb*32}")
        a("s_waitcnt lgkmcnt(0)")
        for ks in range(4):
            for nb in range(4):
                r = AF2 + (ks * 4 + nb) * 2
                kk = half * 4 + ks
                c = "0" if kk == 0 else f"v[{D3+nb*4}:{D3+nb*4+3}]"
                a(f"v_mfma_f32_16x16x16_bf16 v[{D3+nb*4}:{D3+nb*4+3}], v[{r}:{r+1}], v[{BF2+2*kk}:{BF2+1+2*kk}], {c}")
    a("v_lshlrev_b32 v6, 10, v2")
    a("v_lshl_add_u32 v6, v3, 4, v6")
    a("s_lshl_b32 s9, s4, 16")
    a("s_lshl_b32 s11, s3, 8")
    a("s_add_u32 s9, s9, s11")
    for i in range(16):
        a(f"s_add_u32 m0, s10, {i*1024}")
        a(f"buffer_load_dwordx4 v6, {S(RW2)}, s9 offen{WPOL} lds")
        if i < 15: a("s_add_u32 s9, s9, 4096")
    a("v_cmp_gt_u32 vcc, 4, v3")
    a("s_and_saveexec_b64 s[86:87], vcc")
    for nb in range(4):
        a(f"ds_write_b128 v{VR2}, v[{D3+nb*4}:{D3+nb*4+3}] offset:{nb*64}")
    a("s_mov_b64 exec, s[86:87]")
    lds_sync(4)
    a("v_lshlrev_b32 v6, 2, v1")
    a("s_lshl_b32 s9, s3, 8")
    a(f"s_add_u32 s9, s9, {L_RED}")
    a("v_add_u32 v6, s9, v6")
    for w in range(4):
        a(f"ds_read_b32 v{80+w}, v6 offset:{w*1024}")
    a("s_waitcnt lgkmcnt(0)")
    for w in range(1, 4):
        a(f"v_add_f32 v80, v80, v{80+w}")
    bf16r(a, 80, 80)
    a("v_lshlrev_b32 v36, 16, v36")
    a("v_add_f32 v80, v80, v36")
    bf16r(a, 80, 80)
    a("v_mul_f32 v81, v80, v80")
    a(f"v_mul_f32 v81, {f2h(0.044715)}, v81")
    a("v_fma_f32 v81, v81, v80, v80")
    a(f"v_mul_f32 v81, {f2h(k1)}, v81")
    a("v_exp_f32 v81, v81")
    a("v_add_f32 v81, 1.0, v81")
    a("v_rcp_f32 v81, v81")
    a("v_mul_f32 v80, v80, v81")
    a("v_cvt_pk_bf16_f32 v81, v80, v80")
    a("v_lshlrev_b32 v6, 1, v1")
    a("s_lshl_b32 s9, s3, 7")
    a(f"s_add_u32 s9, s9, {L_ACT2}")
    a("v_add_u32 v6, s9, v6")
    a("ds_write_b16 v6, v81")
    lds_sync(8)
    a("v_and_b32 v7, 3, v1")
    a(f"v_lshlrev_b32 v{VB2}, 7, v7")
    a(f"v_lshl_add_u32 v{VB2}, v2, 3, v{VB2}")
    a(f"v_add_u32 v{VB2}, {L_ACT2}, v{VB2}")
    a(f"v_lshrrev_b32 v{VA2}, 2, v1")
    a(f"v_lshlrev_b32 v{VA2}, 8, v{VA2}")
    a(f"v_lshl_add_u32 v{VA2}, v7, 3, v{VA2}")
    a(f"v_add_u32 v{VA2}, s10, v{VA2}")
    a(f"v_add_u32 v40, 1, v{VEP}")
    a("v_lshlrev_b32 v6, 12, v3")
    a("v_lshl_add_u32 v6, v2, 5, v6")
    a("s_waitcnt vmcnt(0)")
    for ks in range(4):
        a(f"ds_read_b64 v[{BF2+2*ks}:{BF2+1+2*ks}], v{VB2} offset:{ks*32}")
    for half in range(2):
        for ks in range(4):
            for nb in range(4):
                r = AF2 + (ks * 4 + nb) * 2
                a(f"ds_read_b64_tr_b16 v[{r}:{r+1}], v{VA2} offset:{ks*4096 + (half*4+nb)*32}")
        a("s_waitcnt lgkmcnt(0)")
        for ks in range(4):
            for nb in range(4):
                r = AF2 + (ks * 4 + nb) * 2
                d = D3 + nb * 4
                c = "0" if ks == 0 else f"v[{d}:{d+3}]"
                a(f"v_mfma_f32_16x16x16_bf16 v[{d}:{d+3}], v[{r}:{r+1}], v[{BF2+2*ks}:{BF2+1+2*ks}], {c}")
        a("s_lshl_b32 s9, s4, 14")
        a("s_lshl_b32 s11, s3, 10")
        a("s_add_u32 s9, s9, s11")
        a(f"s_add_u32 s9, s9, {WS_ZP2 + half*512}")
        for nb in range(4):
            for hh in range(2):
                r = AF2 + (nb * 2 + hh) * 4
                a(f"v_mov_b32 v{r}, v{D3+nb*4+2*hh}")
                a(f"v_mov_b32 v{r+1}, v40")
                a(f"v_mov_b32 v{r+2}, v{D3+nb*4+2*hh+1}")
                a(f"v_mov_b32 v{r+3}, v40")
        a("v_cmp_gt_u32 vcc, 4, v3")
        a("s_and_saveexec_b64 s[86:87], vcc")
        for nb in range(4):
            for hh in range(2):
                r = AF2 + (nb * 2 + hh) * 4
                a(f"buffer_store_dwordx4 v[{r}:{r+3}], v6, {S(RWS)}, s9 offen offset:{nb*128 + hh*16} sc1")
        a("s_mov_b64 exec, s[86:87]")
        if half == 0: a("s_waitcnt vmcnt(0)")
    a.label("L_nomlp")
    if opts.get("touch", 1):
        a("s_cmp_ge_u32 s3, 4")
        a("s_cbranch_scc1 L_notouch")
        a(f"v_mov_b32 v80, v{VEP}")
        a(f"v_mov_b32 v81, v{VEP}")
        a(f"v_mov_b32 v82, v{VEP}")
        a(f"v_mov_b32 v83, v{VEP}")
        a(f"s_add_u32 s9, s84, {16*PSLOT}")
        a(f"buffer_store_dwordx2 v[80:81], v{VI0}, {S(RWS)}, s84 offen sc1")
        a(f"buffer_store_dwordx2 v[80:81], v{VI0}, {S(RWS)}, s9 offen sc1")
        a(f"buffer_store_dwordx4 v[80:83], v{VI1}, {S(RWS)}, s84 offen sc1")
        a(f"buffer_store_dwordx4 v[80:83], v{VI1}, {S(RWS)}, s9 offen sc1")
        a(f"v_lshlrev_b32 v84, 1, v{VI2}")
        a(f"buffer_store_dwordx2 v[80:81], v84, {S(RWS)}, s85 offen sc1")
        a("s_waitcnt vmcnt(0)")
        a.label("L_notouch")
    xrow_reduce(a, Lr, T1, "v_add_f32")
    a("v_lshlrev_b32 v6, 9, v3")
    a("v_lshl_add_u32 v6, v2, 4, v6")
    a("v_add_u32 v6, s10, v6")
    a("v_lshlrev_b32 v7, 3, v3")
    a("v_add_u32 v7, s10, v7")
    a("v_cmp_gt_u32 vcc, 4, v3")
    a("s_and_saveexec_b64 s[86:87], vcc")
    for t in range(8):
        a(f"ds_write_b128 v6, v[{O+4*t}:{O+4*t+3}] offset:{t*64}")
    a(f"ds_write_b64 v7, v[{M}:{M+1}] offset:2048")
    a("s_mov_b64 exec, s[86:87]")
    a("v_lshrrev_b32 v6, 7, v0")
    a("v_and_b32 v7, 127, v0")
    a("v_lshlrev_b32 v8, 9, v6")
    a("v_lshl_add_u32 v8, v7, 2, v8")
    a("v_lshlrev_b32 v9, 3, v6")
    a("v_add_u32 v10, 0x10000, v8")
    a("v_add_u32 v11, 0x10000, v9")
    a("s_waitcnt lgkmcnt(0)")
    a("s_barrier")
    stamp(4)
    if opts.get("x_notail"): a("s_branch L_end")
    for w in range(8):
        a(f"ds_read_b32 v{32+w}, v{8 if w < 4 else 10} offset:{(w&3)*16384}")
        a(f"ds_read_b64 v[{40+2*w}:{41+2*w}], v{9 if w < 4 else 11} offset:{(w&3)*16384+2048}")
    a("s_waitcnt lgkmcnt(0)")
    a("v_max3_f32 v12, v40, v42, v44")
    a("v_max3_f32 v12, v12, v46, v48")
    a("v_max3_f32 v12, v12, v50, v52")
    a("v_max_f32 v12, v12, v54")
    a("v_mov_b32 v14, 0")
    a("v_mov_b32 v13, 0")
    for w in range(8):
        a(f"v_sub_f32 v15, v{40+2*w}, v12")
        a("v_mul_f32 v15, s13, v15")
        a("v_exp_f32 v15, v15")
        a(f"v_fmac_f32 v14, v15, v{32+w}")
        a(f"v_fmac_f32 v13, v15, v{41+2*w}")
    VN = 60
    a(f"v_add_u32 v{VN}, 1, v{VEP}")
    a(f"v_mov_b32 v15, v{VN}")
    a(f"buffer_store_dwordx2 v[14:15], v{VI0}, {S(RWS)}, s84 offen sc1")
    a("v_mul_f32 v56, s13, v12")
    a(f"v_mov_b32 v57, v{VN}")
    a("v_mov_b32 v58, v13")
    a(f"v_mov_b32 v59, v{VN}")
    a("v_cmp_eq_u32 vcc, 0, v7")
    a("s_and_saveexec_b64 s[86:87], vcc")
    a(f"buffer_store_dwordx4 v[56:59], v{VI1}, {S(RWS)}, s84 offen sc1")
    a("s_mov_b64 exec, s[86:87]")
    a(f"s_mov_b32 s9, {256*PSLOT}")
    a("v_mul_lo_u32 v10, v6, s9")
    a("v_lshl_add_u32 v11, v7, 3, v10")
    a("v_add_u32 v10, 1024, v10")
    a(f"s_mul_i32 s9, s4, {8*PSLOT}")
    a(f"s_add_u32 s9, s9, {WS_PART2}")
    a(f"s_add_u32 s15, s9, {4*PSLOT}")
    a("v_lshlrev_b32 v15, 1, v0")
    a(f"v_add_u32 v15, {L_OACT}, v15")
    a("v_and_b32 v14, 3, v1")
    a("v_lshlrev_b32 v16, 8, v14")
    a("v_lshl_add_u32 v16, v2, 3, v16")
    a(f"v_add_u32 v16, {L_OACT}, v16")
    a("v_lshrrev_b32 v17, 2, v1")
    a("v_lshlrev_b32 v17, 7, v17")
    a("v_lshl_add_u32 v17, v14, 3, v17")
    a("s_and_b32 s11, s3, 3")
    a("s_lshl_b32 s11, s11, 5")
    a(f"s_add_u32 s11, s11, {L_WO}")
    a("v_add_u32 v17, s11, v17")
    WF = 128
    for ks in range(8):
        a(f"ds_read_b64_tr_b16 v[{WF+2*ks}:{WF+1+2*ks}], v17 offset:{ks*2048}")
    a("v_lshlrev_b32 v18, 9, v3")
    a("v_lshl_add_u32 v18, v2, 4, v18")
    a("s_and_b32 s11, s3, 3")
    a("s_lshl_b32 s11, s11, 7")
    a("v_add_u32 v18, s11, v18")
    ZR = 144
    a("s_cmp_lt_u32 s2, 224")
    a("s_cbranch_scc1 L_s3pre_done")
    a("s_and_b32 s6, s4, 3")
    a("v_lshlrev_b32 v5, 3, v1")
    a("v_lshlrev_b32 v6, 1, v1")
    a("s_lshl_b32 s92, s3, 14")
    a("s_lshl_b32 s11, s6, 12")
    a("s_add_u32 s92, s92, s11")
    a("s_lshl_b32 s11, s5, 9")
    a("s_add_u32 s92, s92, s11")
    a(f"s_add_u32 s92, s92, {WS_ZP2}")
    a("s_add_u32 s88, s92, 131072")
    a("s_add_u32 s89, s92, 262144")
    a("s_add_u32 s90, s92, 393216")
    a("s_cmp_lt_u32 s3, 4")
    a("s_cselect_b32 s90, s90, s92")
    srd(a, RB, P_B2, 1024)
    a("s_lshl_b32 s11, s5, 7")
    a(f"buffer_load_ushort v{ZR+8}, v6, {S(RB)}, s11 offen")
    a("s_lshl_b32 s94, s6, 10")
    a("s_add_u32 s94, s94, s11")
    a(f"buffer_load_ushort v{ZR+9}, v6, {S(RX)}, s94 offen")
    for i, so in enumerate(("s92", "s88", "s89", "s90")):
        a(f"buffer_load_dwordx2 v[{ZR+2*i}:{ZR+1+2*i}], v5, {S(RWS)}, {so} offen sc1")
    a("s_lshl_b32 s93, s5, 16")
    a("s_lshl_b32 s11, s3, 13")
    a("s_add_u32 s93, s93, s11")
    a("s_lshl_b32 s11, s6, 9")
    a("s_add_u32 s93, s93, s11")
    a(f"s_add_u32 s93, s93, {WS_SP2}")
    a("s_add_u32 s91, s93, 4096")
    a("v_lshlrev_b32 v4, 7, v2")
    a("v_bfe_u32 v7, v1, 1, 1")
    a("v_lshl_add_u32 v4, v7, 6, v4")
    a("v_bfe_u32 v7, v1, 2, 2")
    a("v_lshl_add_u32 v4, v7, 4, v4")
    a("v_and_b32 v7, 1, v1")
    a("v_lshl_add_u32 v4, v7, 3, v4")
    a.label("L_s3pre_done")
    stamp(5)
    PO, PM = 72, 88
    LITE = opts.get("lite", 1)
    a("v_and_b32 v21, 7, v1")
    a(f"v_mul_u32_u24 v21, {PSLOT}, v21")
    a("v_add_u32 v21, v21, v10")
    a("s_mov_b32 s14, 0")
    a("s_mov_b32 s12, 0")
    a.label("L_s2poll")
    for sp in range(8):
        so = "s9" if sp < 4 else "s15"
        a(f"s_bitcmp1_b32 s12, {sp}")
        a(f"s_cbranch_scc1 L_s2sk{sp}")
        a(f"buffer_load_dwordx4 v[{PM+4*sp}:{PM+4*sp+3}], v10, {S(RWS)}, {so} offen offset:{(sp&3)*PSLOT} sc1")
        a(f"buffer_load_dwordx2 v[{PO+2*sp}:{PO+2*sp+1}], v11, {S(RWS)}, {so} offen offset:{(sp&3)*PSLOT} sc1")
        a.raw(f"L_s2sk{sp}:")
    a("s_waitcnt vmcnt(0)")
    for sp in range(8):
        a(f"v_xor_b32 v12, v{PM+4*sp+1}, v{VN}")
        a(f"v_xor_b32 v13, v{PM+4*sp+3}, v{VN}")
        a(f"v_xor_b32 v14, v{PO+2*sp+1}, v{VN}")
        a("v_or3_b32 v12, v12, v13, v14")
        a("v_cmp_eq_u32 vcc, 0, v12")
        a("s_cmp_eq_u64 vcc, exec")
        a(f"s_cselect_b32 s11, {1 << sp}, 0")
        a("s_or_b32 s12, s12, s11")
    a("s_cmp_eq_u32 s12, 0xff")
    a("s_cbranch_scc1 L_s2go")
    a("s_add_u32 s14, s14, 1")
    a(f"s_cmp_ge_u32 s14, {SPIN_MAX}")
    a("s_cbranch_scc1 L_s2go")
    a("s_bcnt1_i32_b32 s11, s12")
    a(f"s_cmp_lt_u32 s11, {8 - LITE}")
    a("s_cbranch_scc1 L_s2lite")
    a(f"s_sleep {opts.get('s2sleep2', 1)}")
    a("s_branch L_s2poll")
    a.label("L_s2lite")
    a("s_xor_b32 s11, s12, 0xff")
    a("s_mov_b32 exec_lo, s11")
    a("s_mov_b32 exec_hi, 0")
    a.label("L_s2pre")
    a(f"s_sleep {opts.get('s2sleep', 8)}")
    a(f"buffer_load_dwordx2 v[24:25], v21, {S(RWS)}, s9 offen sc1")
    a("s_waitcnt vmcnt(0)")
    a(f"v_cmp_ne_u32 vcc, v25, v{VN}")
    a("s_and_b64 exec, exec, vcc")
    a("s_bcnt1_i32_b32 s11, exec_lo")
    a(f"s_cmp_le_u32 s11, {LITE}")
    a("s_cbranch_scc1 L_s2pre_done")
    a("s_add_u32 s14, s14, 1")
    a(f"s_cmp_lt_u32 s14, {SPIN_MAX}")
    a("s_cbranch_scc1 L_s2pre")
    a.label("L_s2pre_done")
    a("s_mov_b64 exec, -1")
    a("s_branch L_s2poll")
    a.label("L_s2go")
    stamp(6)
    a(f"v_max3_f32 v12, v{PM}, v{PM+4}, v{PM+8}")
    a(f"v_max3_f32 v12, v12, v{PM+12}, v{PM+16}")
    a(f"v_max3_f32 v12, v12, v{PM+20}, v{PM+24}")
    a(f"v_max_f32 v12, v12, v{PM+28}")
    a("v_mov_b32 v13, 0")
    a("v_mov_b32 v14, 0")
    for sp in range(8):
        a(f"v_sub_f32 v{40+sp}, v{PM+4*sp}, v12")
        a(f"v_exp_f32 v{40+sp}, v{40+sp}")
    for sp in range(8):
        a(f"v_fmac_f32 v13, v{40+sp}, v{PO+2*sp}")
        a(f"v_fmac_f32 v14, v{40+sp}, v{PM+4*sp+2}")
    a("v_rcp_f32 v14, v14")
    a("v_mul_f32 v13, v13, v14")
    a("v_cvt_pk_bf16_f32 v13, v13, v13")
    a("ds_write_b16 v15, v13")
    a("s_waitcnt lgkmcnt(0)")
    a("s_barrier")
    a("s_cmp_ge_u32 s3, 4")
    a("s_cbranch_scc1 L_s3")
    for ks in range(8):
        a(f"ds_read_b64 v[{72+2*ks}:{73+2*ks}], v16 offset:{ks*32}")
    for ks in range(8):
        a(f"s_waitcnt lgkmcnt({7-ks})")
        c = "0" if ks == 0 else "v[32:35]"
        a(f"v_mfma_f32_16x16x16_bf16 v[32:35], v[{WF+2*ks}:{WF+1+2*ks}], v[{72+2*ks}:{73+2*ks}], {c}")
    a(f"v_mov_b32 v41, v{VN}")
    a(f"v_mov_b32 v43, v{VN}")
    a(f"v_mov_b32 v45, v{VN}")
    a(f"v_mov_b32 v47, v{VN}")
    a("v_cmp_gt_u32 vcc, 4, v3")
    a("v_mov_b32 v40, v32")
    a("v_mov_b32 v42, v33")
    a("v_mov_b32 v44, v34")
    a("v_mov_b32 v46, v35")
    a("s_and_saveexec_b64 s[86:87], vcc")
    a(f"buffer_store_dwordx4 v[40:43], v18, {S(RWS)}, s85 offen sc1")
    a(f"buffer_store_dwordx4 v[44:47], v18, {S(RWS)}, s85 offen offset:64 sc1")
    a("s_mov_b64 exec, s[86:87]")
    a.label("L_s3")
    stamp(7)
    a("s_cmp_lt_u32 s2, 224")
    a("s_cbranch_scc1 L_end")
    a("s_mov_b32 s14, 0")
    a("s_branch L_s3poll")
    a.label("L_s3zpoll")
    for i, so in enumerate(("s92", "s88", "s89", "s90")):
        a(f"buffer_load_dwordx2 v[{ZR+2*i}:{ZR+1+2*i}], v5, {S(RWS)}, {so} offen sc1")
    a.label("L_s3poll")
    for i in range(4):
        so = "s93" if i < 2 else "s91"
        a(f"buffer_load_dwordx2 v[{72+2*i}:{73+2*i}], v4, {S(RWS)}, {so} offen offset:{(i&1)*2048} sc1")
    a("s_waitcnt vmcnt(0)")
    a("s_add_u32 s14, s14, 1")
    a(f"s_cmp_ge_u32 s14, {SPIN_MAX}")
    a("s_cbranch_scc1 L_s3go")
    a(f"v_xor_b32 v12, v{ZR+1}, v{VN}")
    for r in range(ZR + 3, ZR + 8, 2):
        a(f"v_xor_b32 v13, v{r}, v{VN}")
        a("v_or_b32 v12, v12, v13")
    a("v_cmp_eq_u32 vcc, 0, v12")
    a("s_cmp_eq_u64 vcc, exec")
    a("s_cbranch_scc0 L_s3zpoll")
    a(f"v_xor_b32 v12, v73, v{VN}")
    for r in range(75, 80, 2):
        a(f"v_xor_b32 v13, v{r}, v{VN}")
        a("v_or_b32 v12, v12, v13")
    a("v_cmp_eq_u32 vcc, 0, v12")
    a("s_cmp_eq_u64 vcc, exec")
    a("s_cbranch_scc1 L_s3go")
    if opts.get("s3sleep", 1): a(f"s_sleep {opts.get('s3sleep', 1)}")
    a("s_branch L_s3poll")
    a.label("L_s3go")
    stamp(8)
    a("v_add_f32 v32, v72, v74")
    a("v_add_f32 v34, v76, v78")
    a("v_add_f32 v32, v32, v34")
    a(f"v_add_f32 v33, v{ZR}, v{ZR+2}")
    a(f"v_add_f32 v33, v33, v{ZR+4}")
    a("s_cmp_lt_u32 s3, 4")
    a("s_cbranch_scc0 L_s3noz")
    a(f"v_add_f32 v33, v33, v{ZR+6}")
    a.label("L_s3noz")
    a("v_lshlrev_b32 v7, 3, v1")
    a("s_lshl_b32 s9, s3, 9")
    a(f"s_add_u32 s9, s9, {L_S3}")
    a("v_add_u32 v8, s9, v7")
    a("ds_write_b64 v8, v[32:33]")
    a("s_waitcnt lgkmcnt(0)")
    a("s_barrier")
    a("s_cmp_lg_u32 s3, 0")
    a("s_cbranch_scc1 L_end")
    a(f"v_add_u32 v8, {L_S3}, v7")
    for w in range(8):
        a(f"ds_read_b64 v[{16+2*w}:{17+2*w}], v8 offset:{w*512}")
    a("s_waitcnt lgkmcnt(0)")
    for w in range(1, 8):
        a(f"v_add_f32 v16, v16, v{16+2*w}")
        a(f"v_add_f32 v17, v17, v{17+2*w}")
    bf16r(a, 16, 16)
    bf16r(a, 17, 17)
    a(f"v_lshlrev_b32 v44, 16, v{ZR+8}")
    a(f"v_lshlrev_b32 v45, 16, v{ZR+9}")
    a("v_add_f32 v17, v17, v44")
    bf16r(a, 17, 17)
    a(f"v_mul_f32 v10, {f2h(-LOG2E)}, v17")
    a("v_exp_f32 v10, v10")
    a("v_add_f32 v10, 1.0, v10")
    a("v_rcp_f32 v10, v10")
    a("v_mul_f32 v17, v17, v10")
    bf16r(a, 17, 17)
    a("v_mul_f32 v16, v16, v17")
    bf16r(a, 16, 16)
    a("v_add_f32 v16, v16, v45")
    a("v_cvt_pk_bf16_f32 v16, v16, v16")
    a(f"buffer_store_short v16, v6, {S(ROUT)}, s94 offen")
    a("s_cmp_lg_u32 s2, 255")
    a("s_cbranch_scc1 L_end")
    a("v_mov_b32 v17, 1")
    a("v_mov_b32 v18, 0")
    a(f"s_mov_b32 s9, {WS_EPOCH}")
    a("s_mov_b64 exec, 1")
    a(f"buffer_atomic_add v17, v18, {S(RWS)}, s9 offen")
    a("s_mov_b64 exec, -1")
    a.label("L_end")
    if STAMP:
        stamp(9)
        a("s_cmp_lg_u32 s2, 255")
        a("s_cbranch_scc1 L_exit")
        a("s_cmp_lg_u32 s3, 0")
        a("s_cbranch_scc1 L_exit")
        a(f"v_readlane_b32 s9, v{VST}, 0")
        a(f"v_subrev_u32 v{VST}, s9, v{VST}")
        a("v_lshlrev_b32 v6, 2, v1")
        a("v_cmp_gt_u32 vcc, 16, v1")
        a("s_and_saveexec_b64 s[86:87], vcc")
        a(f"buffer_store_dword v{VST}, v6, {S(RDBG)}, 0 offen")
    a.label("L_exit")
    a("s_endpgm")
    hdr = f"""; @launch grid=(256,1,1) block=(512,1,1) lds=163840
.amdgcn_target "amdgcn-amd-amdhsa--gfx950"
.text
"""
    return hdr + kernel_begin(KN) + a.text() + '.section .rodata,"a"\n.p2align 6\n' + kd(KN, NV)

if __name__ == "__main__":
    import json
    out = sys.argv[1]
    opts = json.loads(sys.argv[2]) if len(sys.argv) > 2 else {}
    open(out, "w").write(gen(opts))
```
